```python
import torch

def _softmax(x, axis=-1):
    return torch.softmax(x, dim=axis)

def _gelu(x):
    return torch.nn.functional.gelu(x, approximate='tanh')

def _silu(x):
    return torch.nn.functional.silu(x)

def _sigmoid(x):
    return torch.sigmoid(x)

def _layernorm(x, axis=-1, eps=1e-05):
    m = x.mean(dim=axis, keepdim=True)
    v = x.var(dim=axis, keepdim=True, unbiased=False)
    return (x - m) / torch.sqrt(v + eps)

def _scatter_add(tgt, idx, src, axis=0):
    return tgt.clone().index_add_(axis, idx, src)

def _segment_sum(src, seg, n):
    out = torch.zeros((n,) + src.shape[1:], dtype=src.dtype)
    return out.index_add_(0, seg, src)

def _pad(x, pw):
    flat = tuple((v for pair in reversed(pw) for v in pair))
    return torch.nn.functional.pad(x, flat)
kernel_name = 'adaLN_cond__sliding_block_cached__glu_gated_swiglu__decode'

def setup_inputs():

    _w = lambda a: (lambda t: t.to(torch.bfloat16) if t.is_floating_point() else t)(torch.as_tensor(a))

    def _A_setup():
        B, Sq, D = (4, 1, 512)
        Hq, Hkv, Sk, Dh = (32, 8, 4096, 128)
        assert Hq % Hkv == 0, (Hq, Hkv)
        return {'x': _w((lambda *s: torch.randn(*s, dtype=torch.bfloat16) * 0.1)(B, Sq, D)), 'k_cache': _w((lambda *s: torch.randn(*s, dtype=torch.bfloat16) * 0.8)(B, Hkv, Sk, Dh)), 'v_cache': _w((lambda *s: torch.randn(*s, dtype=torch.bfloat16) * 3.2)(B, Hkv, Sk, Dh)), 'wq': _w((lambda *s: torch.randn(*s, dtype=torch.bfloat16) * 0.8)(D, Hq * Dh) * D ** (-0.5)), 'wo': _w((lambda *s: torch.randn(*s, dtype=torch.bfloat16) * 3.2)(Hq * Dh, D) * (Hq * Dh) ** (-0.5))}
    _A_in = _A_setup()

    def _B_setup():
        B, S, D, F = (4, 1, 512, 1792)
        return {'x': _w((lambda *s: torch.randn(*s, dtype=torch.bfloat16) * 0.1)(B, S, D)), 'w1': _w((lambda *s: torch.randn(*s, dtype=torch.bfloat16) * 3.2)(D, F) * (2.0 / D) ** 0.5), 'w3': _w((lambda *s: torch.randn(*s, dtype=torch.bfloat16) * 3.2)(D, F) * (2.0 / D) ** 0.5), 'w2': _w((lambda *s: torch.randn(*s, dtype=torch.bfloat16) * 3.2)(F, D) * (2.0 / F) ** 0.5)}
    _B_in = _B_setup()
    return {'A_x': _A_in['x'], 'A_k_cache': _A_in['k_cache'], 'A_v_cache': _A_in['v_cache'], 'A_wq': _A_in['wq'], 'A_wo': _A_in['wo'], 'B_x': _B_in['x'], 'B_w1': _B_in['w1'], 'B_w3': _B_in['w3'], 'B_w2': _B_in['w2'], 'c': _w((lambda *s: torch.randn(*s, dtype=torch.bfloat16) * 0.8)(4, 512) * 8.0), 'w_mod': _w((lambda *s: torch.randn(*s, dtype=torch.bfloat16) * 0.8)(512, 6 * 512) * 512 ** (-0.5) * 8.0)}

def reference(A_x, A_k_cache, A_v_cache, A_wq, A_wo, B_x, B_w1, B_w3, B_w2, c, w_mod):

    def _A_ref(x, k_cache, v_cache, wq, wo):
        B, Sq, D = x.shape
        Hq, Dh = (32, 128)
        Hkv, Sk = (k_cache.shape[1], k_cache.shape[2])
        W = min(4096, max(256, Sk // 4))
        rep = Hq // Hkv
        q = (lambda x, *d: x.permute(*d))((x @ wq).reshape(B, Sq, Hq, Dh), 0, 2, 1, 3)
        k = (lambda x, n, axis: torch.repeat_interleave(x, n, dim=axis))(k_cache[:, :, Sk - W:, :], rep, axis=1)
        v = (lambda x, n, axis: torch.repeat_interleave(x, n, dim=axis))(v_cache[:, :, Sk - W:, :], rep, axis=1)
        scores = torch.einsum('bhqd,bhkd->bhqk', q, k) * Dh ** (-0.5)
        p = _softmax(scores, axis=-1)
        o = torch.einsum('bhqk,bhkd->bhqd', p, v)
        return (lambda x, *d: x.permute(*d))(o, 0, 2, 1, 3).reshape(B, Sq, Hq * Dh) @ wo

    def _B_ref(x, w1, w3, w2):
        gate = torch.einsum('bsd,df->bsf', x, w1)
        up = torch.einsum('bsd,df->bsf', x, w3)
        h = _silu(gate) * up
        out = torch.einsum('bsf,fd->bsd', h, w2)
        return out
    x = A_x
    mod = (_silu(c) @ w_mod).reshape(c.shape[0], 6, 1, -1)
    sa, ca, ga, sb, cb, gb = (mod[:, 0].clone(), mod[:, 1].clone(), mod[:, 2].clone(), mod[:, 3].clone(), mod[:, 4].clone(), mod[:, 5].clone())
    h = _layernorm(x, axis=-1) * (1 + ca) + sa
    x = x + ga * _A_ref(h, A_k_cache, A_v_cache, A_wq, A_wo)
    h = _layernorm(x, axis=-1) * (1 + cb) + sb
    x = x + gb * _B_ref(h, B_w1, B_w3, B_w2)
    return x
```

```python
import sys, subprocess, re, os, argparse

KN = "adaLN_cond__sliding_block_cached__glu_gated_swiglu__decode_kernel"

REP = 0x2100
H1 = 0x20000
CB = 0x40000
SB = 0x60000
H5 = 0x80000
H2 = 0xA0000
H3 = 0x100000
H4 = 0x180000
H6 = 0x200000
STAMP = 0x400000
WS_SIZE = 0x480000
NSTAMP = 14

S_WAVE, S_TAG, S_XCD, S_J, S_T = 3, 4, 5, 6, 7
R_WS, R_X, R_K, R_V, R_WQ, R_WO, R_W1, R_W3, R_W2, R_C, R_WM, R_OUT = 8, 12, 16, 20, 24, 28, 32, 36, 40, 44, 48, 52
S_PLO, S_PHI, S_BUDGET = 56, 57, 58
S_A, S_B, S_C, S_D = 59, 60, 61, 62
S_JI = 63
S_G = 64
S_ST = 72
LOG2E = 0x3FB8AA3B
SCALE = 0x3DB504F3
EPS = 0x3727C5AC
INV512 = 0x3B000000
USEFUL = 0xF0000F0000F0000F
FULL = "row_mask:0xf bank_mask:0xf"


def srd(r):
    return f"s[{r}:{r+3}]"


def vr(a, n):
    return f"v[{a}:{a+n-1}]"


class Gen:
    def __init__(self, opt):
        self.L = []
        self.opt = opt
        self.uid = 0
        self.vtmp = None

    def e(self, s):
        self.L.append("    " + s)

    def lab(self, l):
        self.L.append(l + ":")

    def c(self, s):
        self.L.append("    ; " + s)

    def new(self, p):
        self.uid += 1
        return f"L_{p}_{self.uid}"

    def stamp(self, idx):
        if self.opt.stamps:
            assert idx < NSTAMP
            self.e(f"s_memrealtime s[{S_ST+2*idx}:{S_ST+2*idx+1}]")

    def exec_mask(self, m):
        if m == -1:
            self.e("s_mov_b64 exec, -1")
        else:
            lo, hi = m & 0xFFFFFFFF, m >> 32
            self.e(f"s_mov_b32 exec_lo, 0x{lo:x}")
            self.e(f"s_mov_b32 exec_hi, 0x{hi:x}")

    def only_wave(self, w, lab):
        self.e(f"s_cmp_lg_u32 s{S_WAVE}, {w}")
        self.e(f"s_cbranch_scc1 {lab}")

    def poll_loads(self, loads):
        for (d, n, vo, imm) in loads:
            op = {2: "dwordx2", 4: "dwordx4"}[n]
            self.e(f"buffer_load_{op} {vr(d, n)}, v{vo}, {srd(R_WS)}, 0 offen offset:{imm} sc1")

    def poll(self, loads, tags, vtag, first_issued=False):
        top = self.new("poll")
        chk = self.new("chk")
        if first_issued:
            self.e(f"s_branch {chk}")
        self.lab(top)
        self.poll_loads(loads)
        self.e(f"s_sub_u32 s{S_BUDGET}, s{S_BUDGET}, 1")
        self.e("s_cbranch_scc1 L_end")
        self.lab(chk)
        self.e("s_waitcnt vmcnt(0)")
        if len(tags) == 1:
            self.e(f"v_cmp_ne_u32 vcc, v{tags[0]}, v{vtag}")
        else:
            t = self.vtmp
            self.e(f"v_xor_b32 v{t}, v{tags[0]}, v{vtag}")
            for g in tags[1:]:
                self.e(f"v_xor_b32 v{t+1}, v{g}, v{vtag}")
                self.e(f"v_or_b32 v{t}, v{t}, v{t+1}")
            self.e(f"v_cmp_ne_u32 vcc, 0, v{t}")
        self.e(f"s_cbranch_vccnz {top}")

    def dpp(self, op, vals, ctrl, tail=True):
        for v in vals:
            self.e(f"{op}_dpp v{v}, v{v}, v{v} {ctrl} {FULL}")
        if tail and len(vals) < 3:
            self.e(f"s_nop {2-len(vals)}")

    def row_reduce(self, op, vals):
        self.e("s_nop 1")
        for r in (8, 4, 2, 1):
            self.dpp(op, vals, f"row_ror:{r}", tail=(r != 1))

    def scatter4(self, groups, tmps, outs):
        self.e("s_nop 1")
        for gi, g in enumerate(groups):
            t0, t1 = tmps[2 * gi], tmps[2 * gi + 1]
            self.e(f"v_add_f32_dpp v{t0}, v{g[0]}, v{g[0]} row_ror:8 row_mask:0xf bank_mask:0x3")
            self.e(f"v_add_f32_dpp v{t1}, v{g[1]}, v{g[1]} row_ror:8 row_mask:0xf bank_mask:0x3")
            self.e(f"v_add_f32_dpp v{t0}, v{g[2]}, v{g[2]} row_ror:8 row_mask:0xf bank_mask:0xc")
            self.e(f"v_add_f32_dpp v{t1}, v{g[3]}, v{g[3]} row_ror:8 row_mask:0xf bank_mask:0xc")
        if len(groups) == 1:
            self.e("s_nop 0")
        for gi, g in enumerate(groups):
            t0, t1 = tmps[2 * gi], tmps[2 * gi + 1]
            self.e(f"v_add_f32_dpp v{outs[gi]}, v{t0}, v{t0} row_shl:4 row_mask:0xf bank_mask:0x5")
            self.e(f"v_add_f32_dpp v{outs[gi]}, v{t1}, v{t1} row_shr:4 row_mask:0xf bank_mask:0xa")
        self.e("s_nop 1")
        self.dpp("v_add_f32", outs, "quad_perm:[1,0,3,2]")
        self.dpp("v_add_f32", outs, "quad_perm:[2,3,0,1]", tail=False)

    def swap_reduce(self, op, vals, tmps, which):
        for v, t in zip(vals, tmps):
            self.e(f"v_mov_b32 v{t}, v{v}")
        self.e("s_nop 1")
        for v, t in zip(vals, tmps):
            self.e(f"v_permlane{which}_swap_b32 v{v}, v{t}")
        for v, t in zip(vals, tmps):
            self.e(f"{op} v{v}, v{v}, v{t}")

    def round2(self, a, b, t):
        self.e(f"v_cvt_pk_bf16_f32 v{t}, v{a}, v{b}")
        self.e(f"v_lshlrev_b32 v{a}, 16, v{t}")
        self.e(f"v_and_b32 v{b}, 0xffff0000, v{t}")

    def round1(self, a):
        self.e(f"v_cvt_pk_bf16_f32 v{a}, v{a}, v{a}")
        self.e(f"v_lshlrev_b32 v{a}, 16, v{a}")

    def unpack(self, src, a, b):
        self.e(f"v_lshlrev_b32 v{a}, 16, v{src}")
        self.e(f"v_and_b32 v{b}, 0xffff0000, v{src}")

    def transpose_pair(self, src, q, nrows, ndw, dst):
        for d in range(ndw):
            r0 = src + (2 * q) * ndw + d
            r1 = src + (2 * q + 1) * ndw + d
            self.e(f"v_perm_b32 v{dst + (2*d)*(nrows//2) + q}, v{r1}, v{r0}, s{S_PLO}")
            self.e(f"v_perm_b32 v{dst + (2*d+1)*(nrows//2) + q}, v{r1}, v{r0}, s{S_PHI}")

    def transpose(self, src, nrows, ndw, dst):
        for q in range(nrows // 2):
            self.transpose_pair(src, q, nrows, ndw, dst)

    def barrier(self):
        self.e("s_waitcnt lgkmcnt(0)")
        self.e("s_barrier")

    def mk_srd(self, r, size):
        self.e(f"s_mov_b32 s{r+2}, 0x{size:x}")
        self.e(f"s_mov_b32 s{r+3}, 0x20000")

    def make_tag(self, vtag):
        self.e(f"s_mul_i32 s{S_TAG}, s{S_TAG}, 0x9E3779B1")
        self.e(f"s_add_u32 s{S_TAG}, s{S_TAG}, 0x7F4A7C15")
        self.e(f"v_mov_b32 v{vtag}, s{S_TAG}")

    def rowb(self, vrow, vcg, t):
        e = self.e
        e(f"v_bfe_u32 v{vrow}, v0, 2, 2")
        e(f"v_lshlrev_b32 v{vrow}, 4, v{vrow}")
        e(f"v_lshrrev_b32 v{t}, 4, v0")
        e(f"v_lshl_add_u32 v{vrow}, v{t}, 2, v{vrow}")
        e(f"s_lshl_b32 s{S_T}, s{S_WAVE}, 6")
        e(f"v_add_u32 v{vrow}, s{S_T}, v{vrow}")
        e(f"v_and_b32 v{vcg}, 3, v0")

    def ln_finish(self, m, v, t):
        e = self.e
        self.round2(m, v, t)
        e(f"v_add_f32 v{v}, 0x{EPS:x}, v{v}")
        self.round1(v)
        e(f"v_sqrt_f32 v{v}, v{v}")
        e("s_nop 0")
        self.round1(v)
        e(f"v_rcp_f32 v{v}, v{v}")


def role_w(g, opt):
    e, lab, c = g.e, g.lab, g.c
    NT = " nt" if opt.nt else ""
    lab("L_W")
    g.vtmp = 8
    V_ROW, V_CG, V_OM, V_OQ, V_GO, V_TAG, V_LM = 1, 2, 3, 4, 5, 6, 7
    V_CIN, V_SIL, V_M1, V_MT = 10, 12, 14, 18
    V_RA, V_PA = 22, 23
    V_WQ, V_WQT, V_ACC, V_G = 24, 40, 56, 88
    V_X, V_XJ, V_N = 96, 112, 113
    V_LQ = 114
    V_GA, V_GB, V_XR, V_X1 = 116, 118, 120, 122
    T = 124
    XF = 140
    LM1, LM2, LM3 = 0, 32 * 144, 64 * 144
    LQ = 96 * 144
    LO = LQ + 32 * 528
    LT = LO + 8 * 2304
    LR6 = LT + 256
    lds_end = LR6 + 7 * 512

    e(f"s_lshl_b32 s{S_JI}, s{S_XCD}, 4")
    e(f"s_add_u32 s{S_JI}, s{S_JI}, s{S_J}")
    g.rowb(V_ROW, V_CG, 8)
    c("mod offset = rowb*6144 + (cg>>1)*1024 + (cg&1)*4 + 8*JI")
    e(f"v_mul_u32_u24 v{V_OM}, 6144, v{V_ROW}")
    e(f"v_lshrrev_b32 v8, 1, v{V_CG}")
    e(f"v_lshl_add_u32 v{V_OM}, v8, 10, v{V_OM}")
    e(f"v_and_b32 v8, 1, v{V_CG}")
    e(f"v_lshl_add_u32 v{V_OM}, v8, 2, v{V_OM}")
    e(f"s_lshl_b32 s{S_D}, s{S_JI}, 3")
    e(f"v_add_u32 v{V_OM}, s{S_D}, v{V_OM}")
    c("wq offset = rowb*8192 + cg*16 + JI*64")
    e(f"v_lshlrev_b32 v{V_OQ}, 13, v{V_ROW}")
    e(f"v_lshl_add_u32 v{V_OQ}, v{V_CG}, 4, v{V_OQ}")
    e(f"s_lshl_b32 s{S_T}, s{S_JI}, 6")
    e(f"v_add_u32 v{V_OQ}, s{S_T}, v{V_OQ}")
    c("c offset = cg*1024 + rowb*2")
    e(f"v_lshlrev_b32 v7, 1, v{V_ROW}")
    e(f"v_lshl_add_u32 v7, v{V_CG}, 10, v7")
    c("x offsets (wave 0): l*64 ; xJ: (l>>4)*1024 + 8*JI + ((l>>2)&3)*2")
    e(f"v_lshlrev_b32 v8, 6, v0")
    e(f"v_lshrrev_b32 v9, 4, v0")
    e(f"v_lshlrev_b32 v9, 10, v9")
    e(f"v_bfe_u32 v10, v0, 2, 2")
    e(f"v_lshl_add_u32 v9, v10, 1, v9")
    g.mk_srd(R_C, 4096)
    g.mk_srd(R_WM, 512 * 6144)
    g.mk_srd(R_WQ, 512 * 8192)
    g.mk_srd(R_X, 4096)
    e(f"s_mov_b32 s{S_A}, 6144")
    e(f"s_mov_b32 s{S_B}, 12288")
    e(f"s_mov_b32 s{S_C}, 18432")
    e("s_waitcnt lgkmcnt(0)")
    g.stamp(1)
    e(f"s_load_dword s{S_TAG}, s[{R_WS}:{R_WS+1}], 0")
    l0 = g.new("nox")
    g.only_wave(0, l0)
    for k in range(4):
        e(f"buffer_load_dwordx4 {vr(V_X+4*k, 4)}, v8, {srd(R_X)}, 0 offen offset:{16*k}")
    e(f"buffer_load_ushort v{V_XJ}, v9, {srd(R_X)}, s{S_D} offen")
    lab(l0)
    e(f"buffer_load_dwordx2 {vr(V_CIN, 2)}, v7, {srd(R_C)}, 0 offen")
    steps = ("0", f"s{S_A}", f"s{S_B}", f"s{S_C}")
    for j, so in enumerate(steps):
        e(f"buffer_load_dword v{V_M1+j}, v{V_OM}, {srd(R_WM)}, {so} offen")
    e(f"s_mov_b32 s{S_A}, 8192")
    e(f"s_mov_b32 s{S_B}, 16384")
    e(f"s_mov_b32 s{S_C}, 24576")
    for j, so in enumerate(steps):
        e(f"buffer_load_dwordx4 {vr(V_WQ+4*j, 4)}, v{V_OQ}, {srd(R_WQ)}, {so} offen{opt.wqflag}")
    g.mk_srd(R_WO, 4096 * 1024)
    g.mk_srd(R_OUT, 4096)
    c("granule offset (rowb+cg)*16 + (xcd&3)*REP + H1")
    e(f"v_add_lshl_u32 v{V_GO}, v{V_ROW}, v{V_CG}, 4")
    e(f"s_and_b32 s{S_T}, s{S_XCD}, 3")
    e(f"s_mul_i32 s{S_T}, s{S_T}, 0x{REP:x}")
    e(f"s_add_u32 s{S_T}, s{S_T}, 0x{H1:x}")
    e(f"v_add_u32 v{V_GO}, s{S_T}, v{V_GO}")
    c("LDS write addrs: p = 4w + (l>>4); mod: p*144 + b*32 ; q: LQ + p*528 + b*128")
    e(f"v_lshrrev_b32 v{V_LM}, 4, v0")
    e(f"s_lshl_b32 s{S_T}, s{S_WAVE}, 2")
    e(f"v_add_u32 v{V_LM}, s{S_T}, v{V_LM}")
    e(f"v_mul_u32_u24 v{V_LQ}, 528, v{V_LM}")
    e(f"v_lshl_add_u32 v{V_LQ}, v{V_CG}, 7, v{V_LQ}")
    e(f"v_add_u32 v{V_LQ}, {LQ}, v{V_LQ}")
    e(f"v_mul_u32_u24 v{V_LM}, 144, v{V_LM}")
    e(f"v_lshl_add_u32 v{V_LM}, v{V_CG}, 5, v{V_LM}")
    c("mod reduce read addr: pp*144 + b*32 ; publish addr: (l&3)*REP + (JI*4+b)*16")
    e(f"v_and_b32 v{V_RA}, 15, v0")
    e(f"v_mul_u32_u24 v{V_RA}, 144, v{V_RA}")
    e(f"v_lshrrev_b32 v8, 4, v0")
    e(f"v_lshl_add_u32 v{V_RA}, v8, 5, v{V_RA}")
    e(f"s_lshl_b32 s{S_T}, s{S_JI}, 2")
    e(f"v_add_lshl_u32 v{V_PA}, v8, s{S_T}, 4")
    e(f"s_movk_i32 s{S_T}, 0x{REP:x}")
    e(f"v_mad_u32_u24 v{V_PA}, v{V_CG}, s{S_T}, v{V_PA}")
    c("silu(c)")
    e("s_waitcnt vmcnt(8)")
    g.unpack(V_CIN, T, T + 1)
    g.unpack(V_CIN + 1, T + 2, T + 3)
    for k in range(4):
        e(f"v_mul_f32 v{T+4+k}, 0x{LOG2E:x}, v{T+k}")
    for k in range(4):
        e(f"v_exp_f32 v{T+4+k}, -v{T+4+k}")
    for k in range(4):
        e(f"v_add_f32 v{T+4+k}, 1.0, v{T+4+k}")
    for k in range(4):
        e(f"v_rcp_f32 v{T+4+k}, v{T+4+k}")
    for k in range(4):
        e(f"v_mul_f32 v{T+k}, v{T+k}, v{T+4+k}")
    e(f"v_cvt_pk_bf16_f32 v{V_SIL}, v{T}, v{T+1}")
    e(f"v_cvt_pk_bf16_f32 v{V_SIL+1}, v{T+2}, v{T+3}")

    def mod_pass(src, vaddr, off):
        g.transpose(src, 4, 1, V_MT)
        e("s_nop 1")
        e(f"v_mfma_f32_16x16x16_bf16 {vr(V_ACC, 4)}, {vr(V_MT, 2)}, {vr(V_SIL, 2)}, 0")
        e(f"v_mfma_f32_16x16x16_bf16 {vr(V_ACC+4, 4)}, {vr(V_MT+2, 2)}, {vr(V_SIL, 2)}, 0")
        if off:
            e(f"v_add_u32 v{vaddr}, {off}, v{V_LM}")
        g.exec_mask(USEFUL)
        e("s_nop 5")
        for cg in range(4):
            e(f"ds_write2_b32 v{vaddr}, v{V_ACC+cg}, v{V_ACC+4+cg} offset0:{2*cg} offset1:{2*cg+1}")
        g.exec_mask(-1)

    c("wave 0: LN1 while the weights fly")
    l3 = g.new("noln")
    g.only_wave(0, l3)
    for k in range(16):
        g.unpack(V_X + k, XF + 2 * k, XF + 2 * k + 1)
    e(f"v_pk_add_f32 {vr(T, 2)}, {vr(XF, 2)}, {vr(XF+2, 2)}")
    e(f"v_pk_add_f32 {vr(T+2, 2)}, {vr(XF+4, 2)}, {vr(XF+6, 2)}")
    for k in range(2, 8):
        e(f"v_pk_add_f32 {vr(T, 2)}, {vr(T, 2)}, {vr(XF+4*k, 2)}")
        e(f"v_pk_add_f32 {vr(T+2, 2)}, {vr(T+2, 2)}, {vr(XF+4*k+2, 2)}")
    e(f"v_pk_add_f32 {vr(T, 2)}, {vr(T, 2)}, {vr(T+2, 2)}")
    e(f"v_add_f32 v{T}, v{T}, v{T+1}")
    g.row_reduce("v_add_f32", [T])
    e(f"v_mul_f32 v{T}, 0x{INV512:x}, v{T}")
    e(f"v_mov_b32 v{T+2}, 0")
    e(f"v_mov_b32 v{T+3}, 0")
    for k in range(32):
        e(f"v_sub_f32 v{XF+k}, v{XF+k}, v{T}")
    for k in range(16):
        e(f"v_pk_fma_f32 {vr(T+2, 2)}, {vr(XF+2*k, 2)}, {vr(XF+2*k, 2)}, {vr(T+2, 2)}")
    e(f"v_add_f32 v{T+1}, v{T+2}, v{T+3}")
    g.row_reduce("v_add_f32", [T + 1])
    e(f"v_mul_f32 v{T+1}, 0x{INV512:x}, v{T+1}")
    g.ln_finish(T, T + 1, T + 2)
    e(f"v_lshlrev_b32 v{V_XJ}, 16, v{V_XJ}")
    e(f"v_sub_f32 v{V_N}, v{V_XJ}, v{T}")
    g.round1(V_N)
    e(f"v_mul_f32 v{V_N}, v{V_N}, v{T+1}")
    g.round1(V_N)
    lab(l3)
    e("s_waitcnt vmcnt(4)")
    g.stamp(2)
    mod_pass(V_M1, V_LM, 0)
    g.barrier()
    g.make_tag(V_TAG)

    def mod_reduce(base):
        e(f"ds_read_b128 {vr(T+2, 4)}, v{V_RA} offset:{base}")
        e(f"ds_read_b128 {vr(T+6, 4)}, v{V_RA} offset:{base+16}")
        e(f"ds_read_b128 {vr(XF, 4)}, v{V_RA} offset:{base+16*144}")
        e(f"ds_read_b128 {vr(XF+4, 4)}, v{V_RA} offset:{base+16*144+16}")
        e("s_waitcnt lgkmcnt(0)")
        for k in range(4):
            e(f"v_pk_add_f32 {vr(T+2+2*k, 2)}, {vr(T+2+2*k, 2)}, {vr(XF+2*k, 2)}")
        g.scatter4([[T + 2, T + 3, T + 4, T + 5], [T + 6, T + 7, T + 8, T + 9]], [T + 10, T + 11, T + 12, T + 13], [T, T + 1])
        g.round2(T, T + 1, T + 2)

    def publish_bank(v, base):
        e(f"v_mov_b32 v{T+6}, 0")
        e(f"v_mov_b32 v{T+7}, v{V_TAG}")
        e(f"v_mov_b32_dpp v{T+2}, v{v} row_shl:4 {FULL}")
        e(f"s_mov_b32 s{S_T}, 0x{base:x}")
        e(f"v_perm_b32 v{T+4}, v{T+2}, v{v}, s{S_PHI}")
        e("s_nop 1")
        e(f"v_mov_b32_dpp v{T+5}, v{T+4} row_shl:8 {FULL}")
        g.exec_mask(0x000F000F000F000F)
        e(f"buffer_store_dwordx4 {vr(T+4, 4)}, v{V_PA}, {srd(R_WS)}, s{S_T} offen sc1")
        g.exec_mask(-1)

    l4 = g.new("noh")
    g.only_wave(0, l4)
    mod_reduce(LM1)
    e(f"v_add_f32 v{T+1}, 1.0, v{T+1}")
    g.round1(T + 1)
    e(f"v_mul_f32 v{T+1}, v{V_N}, v{T+1}")
    g.round1(T + 1)
    e(f"v_add_f32 v{T}, v{T}, v{T+1}")
    g.round1(T)
    publish_bank(T, H1)
    g.stamp(3)
    lab(l4)
    e("s_waitcnt vmcnt(0)")
    g.stamp(4)
    g.poll_loads([(V_G, 4, V_GO, 0)])
    g.transpose(V_WQ, 4, 4, V_WQT)
    c("q reduce read addr: pp*528 + Q*16, Q = 4w + (l>>4); H2 addr = ((xcd*4 + (Q>>3))*128 + i*8 + (Q&7))*16")
    e(f"v_and_b32 v9, 15, v0")
    e(f"v_mul_u32_u24 v9, 528, v9")
    e(f"v_lshrrev_b32 v10, 4, v0")
    e(f"s_lshl_b32 s{S_T}, s{S_WAVE}, 2")
    e(f"v_add_u32 v10, s{S_T}, v10")
    e(f"v_lshl_add_u32 v{V_OQ}, v10, 4, v9")
    e(f"v_lshrrev_b32 v11, 3, v10")
    e(f"v_lshlrev_b32 v11, 7, v11")
    e(f"v_and_b32 v10, 7, v10")
    e(f"v_add_u32 v11, v11, v10")
    e(f"s_lshl_b32 s{S_T}, s{S_XCD}, 9")
    e(f"s_lshl_b32 s{S_A}, s{S_J}, 3")
    e(f"s_add_u32 s{S_T}, s{S_T}, s{S_A}")
    e(f"v_add_lshl_u32 v11, v11, s{S_T}, 4")
    e(f"s_mov_b32 s{S_A}, 0x{H2:x}")
    e(f"v_mov_b32 v{T+10}, 0")
    e(f"v_mov_b32 v{T+11}, v{V_TAG}")
    g.poll([(V_G, 4, V_GO, 0)], [V_G + 3], V_TAG, first_issued=True)
    g.stamp(5)
    for el in range(8):
        e(f"v_mfma_f32_16x16x16_bf16 {vr(V_ACC+4*el, 4)}, {vr(V_WQT+2*el, 2)}, {vr(V_G, 2)}, 0")
    g.exec_mask(USEFUL)
    for el in range(0, 8, 2):
        if el == 6:
            e("s_nop 0")
        for cg in range(4):
            e(f"ds_write2_b32 v{V_LQ}, v{V_ACC+4*el+cg}, v{V_ACC+4*(el+1)+cg} offset0:{8*cg+el} offset1:{8*cg+el+1}")
    g.exec_mask(-1)
    g.barrier()
    e(f"ds_read_b128 {vr(T, 4)}, v{V_OQ} offset:{LQ}")
    e(f"ds_read_b128 {vr(T+4, 4)}, v{V_OQ} offset:{LQ+16*528}")
    e("s_waitcnt lgkmcnt(0)")
    e(f"v_pk_add_f32 {vr(T, 2)}, {vr(T, 2)}, {vr(T+4, 2)}")
    e(f"v_pk_add_f32 {vr(T+2, 2)}, {vr(T+2, 2)}, {vr(T+6, 2)}")
    g.row_reduce("v_add_f32", list(range(T, T + 4)))
    e(f"v_cvt_pk_bf16_f32 v{T+8}, v{T}, v{T+1}")
    e(f"v_cvt_pk_bf16_f32 v{T+9}, v{T+2}, v{T+3}")
    g.exec_mask(0x0001000100010001)
    e(f"buffer_store_dwordx4 {vr(T+8, 4)}, v11, {srd(R_WS)}, s{S_A} offen sc1")
    g.exec_mask(-1)
    g.stamp(6)
    c("stage 2 loads: wo tile, mod passes 2,3")
    V_WO, V_WOT, V_M2, V_M3 = V_WQ, V_WQT, 14, 96
    V_O3, V_O4, V_LOR, V_LOW = 4, 5, 10, 11
    e(f"s_lshr_b32 s{S_A}, s{S_JI}, 2")
    e(f"s_lshl_b32 s{S_B}, s{S_A}, 7")
    e(f"s_lshl_b32 s{S_C}, s{S_WAVE}, 4")
    e(f"s_add_u32 s{S_B}, s{S_B}, s{S_C}")
    e(f"s_lshl_b32 s{S_B}, s{S_B}, 10")
    e(f"s_and_b32 s{S_C}, s{S_JI}, 3")
    e(f"s_lshl_b32 s{S_D}, s{S_C}, 8")
    e(f"s_add_u32 s{S_B}, s{S_B}, s{S_D}")
    e(f"v_lshrrev_b32 v9, 4, v0")
    e(f"v_lshlrev_b32 v8, 12, v9")
    e(f"v_and_b32 v10, 15, v0")
    e(f"v_lshl_add_u32 v8, v10, 4, v8")
    for j in range(4):
        e(f"buffer_load_dwordx4 {vr(V_WO+4*j, 4)}, v8, {srd(R_WO)}, s{S_B} offen offset:{1024*j}{NT}")
    c("H3 gather offset: H3 + (head*16 + (l&15))*1024 + (8w+2kg)*16")
    e(f"s_lshl_b32 s{S_B}, s{S_A}, 14")
    e(f"s_lshl_b32 s{S_D}, s{S_WAVE}, 7")
    e(f"s_add_u32 s{S_D}, s{S_D}, s{S_B}")
    e(f"s_add_u32 s{S_D}, s{S_D}, 0x{H3:x}")
    e(f"v_lshlrev_b32 v{V_O3}, 10, v10")
    e(f"v_lshl_add_u32 v{V_O3}, v9, 5, v{V_O3}")
    e(f"v_add_u32 v{V_O3}, s{S_D}, v{V_O3}")
    c("wo LDS write addr: LO + w*2304 + piece*144 + b*32")
    e(f"v_mul_u32_u24 v{V_LOW}, 144, v10")
    e(f"v_lshl_add_u32 v{V_LOW}, v9, 5, v{V_LOW}")
    e(f"s_mul_i32 s{S_T}, s{S_WAVE}, 2304")
    e(f"s_add_u32 s{S_T}, s{S_T}, {LO}")
    e(f"v_add_u32 v{V_LOW}, s{S_T}, v{V_LOW}")
    c("reader thread t=64w+l: piece=t>>5, b=(t>>3)&3, c8=t&7 ; H4 off = (red*32+head)*128 + ((c8>>1)&1)*64 + b*16 + (c8&1)*8")
    e(f"s_lshl_b32 s{S_T}, s{S_WAVE}, 1")
    e(f"v_lshrrev_b32 v9, 5, v0")
    e(f"v_add_u32 v9, s{S_T}, v9")
    e(f"v_bfe_u32 v8, v0, 2, 1")
    e(f"v_lshl_add_u32 v8, v9, 1, v8")
    e(f"s_lshl_b32 s{S_T}, s{S_C}, 5")
    e(f"v_add_u32 v8, s{S_T}, v8")
    e(f"v_lshlrev_b32 v{V_O4}, 12, v8")
    e(f"v_bfe_u32 v8, v0, 1, 1")
    e(f"v_lshl_add_u32 v{V_O4}, v8, 6, v{V_O4}")
    e(f"v_bfe_u32 v8, v0, 3, 2")
    e(f"v_lshl_add_u32 v{V_O4}, v8, 4, v{V_O4}")
    e(f"v_and_b32 v8, 1, v0")
    e(f"v_lshl_add_u32 v{V_O4}, v8, 3, v{V_O4}")
    e(f"s_lshl_b32 s{S_T}, s{S_A}, 7")
    e(f"s_add_u32 s{S_T}, s{S_T}, 0x{H4:x}")
    e(f"v_add_u32 v{V_O4}, s{S_T}, v{V_O4}")
    e(f"v_mul_u32_u24 v{V_LOR}, 144, v9")
    e(f"v_and_b32 v8, 31, v0")
    e(f"v_lshl_add_u32 v{V_LOR}, v8, 2, v{V_LOR}")
    e(f"s_mov_b32 s{S_A}, 6144")
    e(f"s_mov_b32 s{S_B}, 12288")
    e(f"s_mov_b32 s{S_C}, 18432")
    for j, so in enumerate(steps):
        e(f"buffer_load_dword v{V_M2+j}, v{V_OM}, {srd(R_WM)}, {so} offen offset:3072")
    e(f"v_lshrrev_b32 v8, 1, v{V_CG}")
    e(f"v_lshl_add_u32 v{V_OM}, v8, 11, v{V_OM}")
    for j, so in enumerate(steps):
        e(f"buffer_load_dword v{V_M3+j}, v{V_OM}, {srd(R_WM)}, {so} offen offset:2048")
    e("s_waitcnt vmcnt(8)")
    g.transpose(V_WO, 4, 4, V_WOT)
    e("s_waitcnt vmcnt(4)")
    mod_pass(V_M2, 8, LM2)
    e("s_waitcnt vmcnt(0)")
    mod_pass(V_M3, 8, LM3)
    g.barrier()
    g.stamp(7)
    l5 = g.new("notab")
    l6 = g.new("nopub")
    g.only_wave(0, l5)
    mod_reduce(LM3)
    e(f"v_lshrrev_b32 v8, 2, v0")
    e(f"v_lshlrev_b32 v8, 2, v8")
    e(f"ds_write_b32 v8, v{T} offset:{LT}")
    e(f"ds_write_b32 v8, v{T+1} offset:{LT+64}")
    e(f"ds_write_b32 v8, v{V_XJ} offset:{LT+128}")
    e(f"v_and_b32 v8, 3, v0")
    e(f"v_lshlrev_b32 v8, 4, v8")
    e(f"v_bfe_u32 v9, v0, 2, 1")
    e(f"v_lshl_add_u32 v8, v9, 3, v8")
    e("s_waitcnt lgkmcnt(0)")
    e(f"ds_read_b64 {vr(V_GA, 2)}, v8 offset:{LT}")
    e(f"ds_read_b64 {vr(V_GB, 2)}, v8 offset:{LT+64}")
    e(f"ds_read_b64 {vr(V_XR, 2)}, v8 offset:{LT+128}")
    e("s_waitcnt lgkmcnt(0)")
    lab(l5)
    g.only_wave(1, l6)
    mod_reduce(LM2)
    e(f"v_add_f32 v{T+1}, 1.0, v{T+1}")
    g.round1(T + 1)
    publish_bank(T, SB)
    e("s_nop 0")
    publish_bank(T + 1, CB)
    lab(l6)
    c("H3 gather + wo")
    g.poll([(V_G, 4, V_O3, 0), (V_G + 4, 4, V_O3, 16)], [V_G + 3, V_G + 7], V_TAG)
    g.stamp(8)
    e(f"v_max_f32_dpp v{T}, v{V_G+2}, v{V_G+2} quad_perm:[1,0,3,2] {FULL}")
    e("s_nop 1")
    e(f"v_max_f32_dpp v{T}, v{T}, v{T} quad_perm:[2,3,0,1] {FULL}")
    e(f"v_sub_f32 v{T}, v{V_G+2}, v{T}")
    e(f"v_exp_f32 v{T+1}, v{T}")
    e("s_nop 0")
    e(f"v_mul_f32 v{T+2}, v{T+1}, v{V_G}")
    e(f"v_mul_f32 v{T+3}, v{T+1}, v{V_G+1}")
    e(f"v_mul_f32 v{T+4}, v{T+1}, v{V_G+4}")
    e(f"v_mul_f32 v{T+5}, v{T+1}, v{V_G+5}")
    g.dpp("v_add_f32", [T + 1, T + 2, T + 3, T + 4, T + 5], "quad_perm:[1,0,3,2]")
    g.dpp("v_add_f32", [T + 1, T + 2, T + 3, T + 4, T + 5], "quad_perm:[2,3,0,1]")
    e(f"v_rcp_f32 v{T+1}, v{T+1}")
    e("s_nop 0")
    for k in range(4):
        e(f"v_mul_f32 v{T+2+k}, v{T+2+k}, v{T+1}")
    e(f"v_cvt_pk_bf16_f32 v{T+6}, v{T+2}, v{T+3}")
    e(f"v_cvt_pk_bf16_f32 v{T+7}, v{T+4}, v{T+5}")
    e("s_nop 1")
    for el in range(8):
        e(f"v_mfma_f32_16x16x16_bf16 {vr(V_ACC+4*el, 4)}, {vr(T+6, 2)}, {vr(V_WOT+2*el, 2)}, 0")
    e("s_nop 4")
    for el in range(0, 8, 2):
        e(f"ds_write2_b32 v{V_LOW}, v{V_ACC+4*el}, v{V_ACC+4*(el+1)} offset0:{el} offset1:{el+1}")
    g.barrier()
    for w in range(8):
        e(f"ds_read_b32 v{T+w}, v{V_LOR} offset:{LO+2304*w}")
    e("s_waitcnt lgkmcnt(0)")
    e(f"v_pk_add_f32 {vr(T, 2)}, {vr(T, 2)}, {vr(T+2, 2)}")
    e(f"v_pk_add_f32 {vr(T+4, 2)}, {vr(T+4, 2)}, {vr(T+6, 2)}")
    e(f"v_pk_add_f32 {vr(T, 2)}, {vr(T, 2)}, {vr(T+4, 2)}")
    e(f"v_add_f32 v{T}, v{T}, v{T+1}")
    e(f"v_mov_b32 v{T+1}, v{V_TAG}")
    e(f"buffer_store_dwordx2 {vr(T, 2)}, v{V_O4}, {srd(R_WS)}, 0 offen sc1")
    g.stamp(9)
    P = V_ACC

    def final_reduce():
        e("s_nop 1")
        g.dpp("v_add_f32", [T, T + 1], "row_ror:8", tail=False)
        g.swap_reduce("v_add_f32", [T, T + 1], [T + 2, T + 3], 16)
        g.swap_reduce("v_add_f32", [T, T + 1], [T + 2, T + 3], 32)

    def resid(gate, xin):
        g.round2(T, T + 1, T + 2)
        e(f"v_mul_f32 v{T}, v{gate}, v{T}")
        e(f"v_mul_f32 v{T+1}, v{gate+1}, v{T+1}")
        g.round2(T, T + 1, T + 2)
        e(f"v_add_f32 v{T}, v{xin}, v{T}")
        e(f"v_add_f32 v{T+1}, v{xin+1}, v{T+1}")
        e(f"v_cvt_pk_bf16_f32 v{T+4}, v{T}, v{T+1}")

    c("R4 (wave 0)")
    l7 = g.new("nor4")
    g.only_wave(0, l7)
    e(f"s_lshl_b32 s{S_T}, s{S_JI}, 12")
    e(f"s_add_u32 s{S_T}, s{S_T}, 0x{H4:x}")
    e(f"v_lshlrev_b32 v4, 4, v0")
    e(f"v_add_u32 v4, s{S_T}, v4")
    e(f"v_lshrrev_b32 v5, 3, v0")
    e(f"v_mul_u32_u24 v5, 0x{REP:x}, v5")
    e(f"v_lshl_add_u32 v5, v{V_CG}, 4, v5")
    e(f"s_lshl_b32 s{S_A}, s{S_JI}, 6")
    e(f"s_add_u32 s{S_A}, s{S_A}, 0x{H5:x}")
    e(f"v_mov_b32 v{T+6}, 0")
    e(f"v_mov_b32 v{T+7}, v{V_TAG}")
    g.poll([(P + 4 * k, 4, 4, 1024 * k) for k in range(4)], [P + 4 * k + o for k in range(4) for o in (1, 3)], V_TAG)
    g.stamp(10)
    e(f"v_add_f32 v{T}, v{P}, v{P+4}")
    e(f"v_add_f32 v{T+1}, v{P+2}, v{P+6}")
    e(f"v_add_f32 v{T+2}, v{P+8}, v{P+12}")
    e(f"v_add_f32 v{T+3}, v{P+10}, v{P+14}")
    e(f"v_add_f32 v{T}, v{T}, v{T+2}")
    e(f"v_add_f32 v{T+1}, v{T+1}, v{T+3}")
    final_reduce()
    resid(V_GA, V_XR)
    e("s_nop 1")
    e(f"v_mov_b32_dpp v{T+5}, v{T+4} row_shl:4 {FULL}")
    g.exec_mask(0x0F0F0F0F)
    e(f"buffer_store_dwordx4 {vr(T+4, 4)}, v5, {srd(R_WS)}, s{S_A} offen sc1")
    g.exec_mask(-1)
    g.unpack(T + 4, V_X1, V_X1 + 1)
    g.stamp(11)
    lab(l7)
    c("R6: waves 0..6 gather 16 lines each")
    l8 = g.new("nor6")
    e(f"s_lshl_b32 s{S_A}, s{S_WAVE}, 9")
    e(f"v_lshlrev_b32 v5, 3, v0")
    e(f"v_add_u32 v5, s{S_A}, v5")
    e(f"s_cmp_eq_u32 s{S_WAVE}, 7")
    e(f"s_cbranch_scc1 {l8}")
    e(f"s_mul_i32 s{S_T}, s{S_JI}, 14336")
    e(f"s_lshl_b32 s{S_A}, s{S_WAVE}, 11")
    e(f"s_add_u32 s{S_T}, s{S_T}, s{S_A}")
    e(f"s_add_u32 s{S_T}, s{S_T}, 0x{H6:x}")
    e(f"v_lshlrev_b32 v4, 4, v0")
    e(f"v_add_u32 v4, s{S_T}, v4")
    c("out offset = b*1024 + half*4 (+8*JI)")
    e(f"v_lshlrev_b32 v10, 10, v{V_CG}")
    e(f"v_and_b32 v9, 4, v0")
    e(f"v_or_b32 v10, v10, v9")
    e(f"s_lshl_b32 s{S_A}, s{S_JI}, 3")
    g.poll([(P, 4, 4, 0), (P + 4, 4, 4, 1024)], [P + 1, P + 3, P + 5, P + 7], V_TAG)
    e(f"v_add_f32 v{T}, v{P}, v{P+4}")
    e(f"v_add_f32 v{T+1}, v{P+2}, v{P+6}")
    e(f"ds_write_b64 v5, {vr(T, 2)} offset:{LR6}")
    lab(l8)
    g.barrier()
    g.stamp(12)
    g.only_wave(0, "L_end")
    for w in range(7):
        e(f"ds_read_b64 {vr(P+2*w, 2)}, v5 offset:{LR6+512*w}")
    e("s_waitcnt lgkmcnt(0)")
    e(f"v_pk_add_f32 {vr(P, 2)}, {vr(P, 2)}, {vr(P+2, 2)}")
    e(f"v_pk_add_f32 {vr(P+4, 2)}, {vr(P+4, 2)}, {vr(P+6, 2)}")
    e(f"v_pk_add_f32 {vr(P+8, 2)}, {vr(P+8, 2)}, {vr(P+10, 2)}")
    e(f"v_pk_add_f32 {vr(P, 2)}, {vr(P, 2)}, {vr(P+4, 2)}")
    e(f"v_pk_add_f32 {vr(P+8, 2)}, {vr(P+8, 2)}, {vr(P+12, 2)}")
    e(f"v_pk_add_f32 {vr(T, 2)}, {vr(P, 2)}, {vr(P+8, 2)}")
    final_reduce()
    resid(V_GB, V_X1)
    g.exec_mask(0xFF)
    e(f"buffer_store_dword v{T+4}, v10, {srd(R_OUT)}, s{S_A} offen")
    g.stamp(13)
    e(f"s_cmp_lg_u32 s{S_JI}, 0")
    e("s_cbranch_scc1 L_end")
    g.exec_mask(1)
    e(f"v_mov_b32 v8, 0")
    e(f"buffer_store_dword v{V_TAG}, v8, {srd(R_WS)}, 0 offen")
    e("s_branch L_end")
    return lds_end, 172


def role_a(g, opt):
    e, lab, c = g.e, g.lab, g.c
    NT = " nt" if opt.nt else ""
    lab("L_A")
    g.vtmp = 8
    V_OK, V_OV, V_OQ, V_TAG, V_LQW, V_LQR, V_LOW = 1, 2, 3, 4, 5, 6, 7
    V_G = 12
    V_K, V_V, V_VT, V_Q, V_S, V_P = 16, 48, 80, 112, 128, 136
    V_O = V_K
    T = 140
    LQA = 0
    LS = 1152
    LA = 1408
    LN = LA + 8 * 2560
    LF = LN + 256
    LH = LF + 32 * 528
    lds_end = LH + 128
    c("b = j>>2, s = j&3 ; key base = ((b*8+hkv)*4096 + 3072 + 256*s + 32*w) * 256")
    e(f"s_lshr_b32 s{S_A}, s{S_J}, 2")
    e(f"s_lshl_b32 s{S_B}, s{S_A}, 3")
    e(f"s_add_u32 s{S_B}, s{S_B}, s{S_XCD}")
    e(f"s_lshl_b32 s{S_B}, s{S_B}, 12")
    e(f"s_and_b32 s{S_C}, s{S_J}, 3")
    e(f"s_lshl_b32 s{S_C}, s{S_C}, 8")
    e(f"s_add_u32 s{S_B}, s{S_B}, s{S_C}")
    e(f"s_lshl_b32 s{S_C}, s{S_WAVE}, 5")
    e(f"s_add_u32 s{S_B}, s{S_B}, s{S_C}")
    e(f"s_add_u32 s{S_B}, s{S_B}, 3072")
    e(f"s_lshl_b32 s{S_B}, s{S_B}, 8")
    e(f"s_add_u32 s{S_C}, s{S_B}, 4096")
    e(f"v_and_b32 v8, 15, v0")
    e(f"v_lshrrev_b32 v9, 4, v0")
    e(f"v_lshlrev_b32 v{V_OK}, 8, v8")
    e(f"v_lshl_add_u32 v{V_OK}, v9, 4, v{V_OK}")
    e(f"v_lshlrev_b32 v{V_OV}, 10, v9")
    e(f"v_lshl_add_u32 v{V_OV}, v8, 4, v{V_OV}")
    g.mk_srd(R_K, 4 * 8 * 4096 * 256)
    g.mk_srd(R_V, 4 * 8 * 4096 * 256)
    e("s_waitcnt lgkmcnt(0)")
    g.stamp(1)
    e(f"s_load_dword s{S_TAG}, s[{R_WS}:{R_WS+1}], 0")
    for t in range(2):
        for db in range(4):
            e(f"buffer_load_dwordx4 {vr(V_K+16*t+4*db, 4)}, v{V_OK}, {srd(R_K)}, s{(S_B, S_C)[t]} offen offset:{64*db}{opt.kflag}")
    for t in range(2):
        for r in range(4):
            e(f"buffer_load_dwordx4 {vr(V_V+16*t+4*r, 4)}, v{V_OV}, {srd(R_V)}, s{(S_B, S_C)[t]} offen offset:{256*r}{NT}")
    c("q granule addr = H2 + ((xcd*4+b)*128 + 16w + (l&15))*16")
    e(f"s_lshl_b32 s{S_T}, s{S_XCD}, 2")
    e(f"s_add_u32 s{S_T}, s{S_T}, s{S_A}")
    e(f"s_lshl_b32 s{S_T}, s{S_T}, 11")
    e(f"s_lshl_b32 s{S_D}, s{S_WAVE}, 8")
    e(f"s_add_u32 s{S_T}, s{S_T}, s{S_D}")
    e(f"s_add_u32 s{S_T}, s{S_T}, 0x{H2:x}")
    e(f"v_lshlrev_b32 v{V_OQ}, 4, v8")
    e(f"v_add_u32 v{V_OQ}, s{S_T}, v{V_OQ}")
    g.poll_loads([(V_G, 4, V_OQ, 0)])
    g.stamp(2)
    c("LDS q write: (w>>1)*272 + (w&1)*128 + (l&15)*8 ; read: ((l&15)>>2)*272 + (l>>4)*16")
    e(f"s_lshr_b32 s{S_T}, s{S_WAVE}, 1")
    e(f"s_mul_i32 s{S_T}, s{S_T}, 272")
    e(f"s_and_b32 s{S_D}, s{S_WAVE}, 1")
    e(f"s_lshl_b32 s{S_D}, s{S_D}, 7")
    e(f"s_add_u32 s{S_T}, s{S_T}, s{S_D}")
    e(f"v_lshlrev_b32 v{V_LQW}, 3, v8")
    e(f"v_add_u32 v{V_LQW}, s{S_T}, v{V_LQW}")
    e(f"v_lshrrev_b32 v10, 2, v8")
    e(f"v_mul_u32_u24 v{V_LQR}, 272, v10")
    e(f"v_lshl_add_u32 v{V_LQR}, v9, 4, v{V_LQR}")
    c("o partial write: LA + w*2560 + head(l>>4)*640 + piece*40 ; stats write: LS + (head*8+w)*8")
    e(f"v_mul_u32_u24 v{V_LOW}, 640, v9")
    e(f"v_mad_u32_u24 v{V_LOW}, v8, 40, v{V_LOW}")
    e(f"s_mul_i32 s{S_T}, s{S_WAVE}, 2560")
    e(f"s_add_u32 s{S_T}, s{S_T}, {LA}")
    e(f"v_add_u32 v{V_LOW}, s{S_T}, v{V_LOW}")
    V_LSW = 11
    e(f"v_lshlrev_b32 v{V_LSW}, 6, v10")
    e(f"s_lshl_b32 s{S_T}, s{S_WAVE}, 3")
    e(f"v_add_u32 v{V_LSW}, s{S_T}, v{V_LSW}")
    g.mk_srd(R_W1, 512 * 3584)
    g.mk_srd(R_W3, 512 * 3584)
    g.mk_srd(R_W2, 1792 * 1024)
    e("s_waitcnt lgkmcnt(0)")
    g.make_tag(V_TAG)
    for q in range(4):
        e(f"s_waitcnt vmcnt({7-2*q})")
        g.transpose_pair(V_V, q, 8, 4, V_VT)
    g.stamp(3)
    g.poll([(V_G, 4, V_OQ, 0)], [V_G + 3], V_TAG, first_issued=True)
    g.stamp(4)
    e(f"ds_write_b64 v{V_LQW}, {vr(V_G, 2)} offset:{LQA}")
    g.barrier()
    for db in range(4):
        e(f"ds_read_b128 {vr(V_Q+4*db, 4)}, v{V_LQR} offset:{LQA+64*db}")
    for db in range(4):
        e(f"s_waitcnt lgkmcnt({3-db})" if not opt.stamps else "s_waitcnt lgkmcnt(0)")
        for t in range(2):
            cin = "0" if db == 0 else vr(V_S + 4 * t, 4)
            e(f"v_mfma_f32_16x16x32_bf16 {vr(V_S+4*t, 4)}, {vr(V_K+16*t+4*db, 4)}, {vr(V_Q+4*db, 4)}, {cin}")
    e("s_nop 6")
    for k in range(0, 8, 2):
        g.round2(V_S + k, V_S + k + 1, T)
    for k in range(8):
        e(f"v_mul_f32 v{V_S+k}, 0x{SCALE:x}, v{V_S+k}")
    for k in range(0, 8, 2):
        g.round2(V_S + k, V_S + k + 1, T)
    e(f"v_max3_f32 v{T}, v{V_S}, v{V_S+1}, v{V_S+2}")
    e(f"v_max3_f32 v{T+1}, v{V_S+3}, v{V_S+4}, v{V_S+5}")
    e(f"v_max3_f32 v{T}, v{T}, v{V_S+6}, v{V_S+7}")
    e(f"v_max_f32 v{T}, v{T}, v{T+1}")
    g.swap_reduce("v_max_f32", [T], [T + 1], 16)
    g.swap_reduce("v_max_f32", [T], [T + 1], 32)
    for k in range(8):
        e(f"v_sub_f32 v{V_S+k}, v{V_S+k}, v{T}")
    for k in range(8):
        e(f"v_mul_f32 v{V_S+k}, 0x{LOG2E:x}, v{V_S+k}")
    for k in range(8):
        e(f"v_exp_f32 v{V_S+k}, v{V_S+k}")
    for k in range(4):
        e(f"v_cvt_pk_bf16_f32 v{V_P+k}, v{V_S+2*k}, v{V_S+2*k+1}")
    e(f"v_pk_add_f32 {vr(T+2, 2)}, {vr(V_S, 2)}, {vr(V_S+2, 2)}")
    e(f"v_pk_add_f32 {vr(T+4, 2)}, {vr(V_S+4, 2)}, {vr(V_S+6, 2)}")
    for c8 in range(8):
        e(f"v_mfma_f32_16x16x32_bf16 {vr(V_O+4*c8, 4)}, {vr(V_P, 4)}, {vr(V_VT+4*c8, 4)}, 0")
    e(f"v_pk_add_f32 {vr(T+2, 2)}, {vr(T+2, 2)}, {vr(T+4, 2)}")
    e(f"v_add_f32 v{T+1}, v{T+2}, v{T+3}")
    g.swap_reduce("v_add_f32", [T + 1], [T + 2], 16)
    g.swap_reduce("v_add_f32", [T + 1], [T + 2], 32)
    e(f"ds_write_b64 v{V_LSW}, {vr(T, 2)} offset:{LS}")
    for c8 in range(0, 8, 2):
        e(f"ds_write2_b32 v{V_LOW}, v{V_O+4*c8}, v{V_O+4*(c8+1)} offset0:{c8} offset1:{c8+1}")
    c("combine addresses (waves 0..3 = head): stats LS + head*64 + (l&7)*8 ; o: LA + head*640 + (l>>2)*40 + (l&3)*8")
    e(f"v_and_b32 v8, 7, v0")
    e(f"v_lshlrev_b32 v8, 3, v8")
    e(f"s_lshl_b32 s{S_T}, s{S_WAVE}, 6")
    e(f"v_add_u32 v8, s{S_T}, v8")
    e(f"v_lshrrev_b32 v9, 2, v0")
    e(f"v_mul_u32_u24 v9, 40, v9")
    e(f"v_and_b32 v10, 3, v0")
    e(f"v_lshl_add_u32 v9, v10, 3, v9")
    e(f"s_mul_i32 s{S_T}, s{S_WAVE}, 640")
    e(f"v_add_u32 v9, s{S_T}, v9")
    c("H3 addr = H3 + ((xcd*4+head)*16 + j)*1024 + l*16")
    e(f"s_lshl_b32 s{S_T}, s{S_XCD}, 2")
    e(f"s_add_u32 s{S_T}, s{S_T}, s{S_WAVE}")
    e(f"s_lshl_b32 s{S_T}, s{S_T}, 4")
    e(f"s_add_u32 s{S_T}, s{S_T}, s{S_J}")
    e(f"s_lshl_b32 s{S_T}, s{S_T}, 10")
    e(f"s_add_u32 s{S_D}, s{S_T}, 0x{H3:x}")
    e(f"v_lshlrev_b32 v10, 4, v0")
    g.barrier()
    g.stamp(5)
    l1 = g.new("nocomb")
    e(f"s_cmp_ge_u32 s{S_WAVE}, 4")
    e(f"s_cbranch_scc1 {l1}")
    e(f"ds_read_b64 {vr(T, 2)}, v8 offset:{LS}")
    for w in range(8):
        e(f"ds_read_b64 {vr(T+8+2*w, 2)}, v9 offset:{LA+2560*w}")
    e("s_waitcnt lgkmcnt(8)" if not opt.stamps else "s_waitcnt lgkmcnt(0)")
    e(f"v_max_f32_dpp v{T+2}, v{T}, v{T} quad_perm:[1,0,3,2] {FULL}")
    e("s_nop 1")
    e(f"v_max_f32_dpp v{T+2}, v{T+2}, v{T+2} quad_perm:[2,3,0,1] {FULL}")
    e("s_nop 1")
    e(f"v_max_f32_dpp v{T+2}, v{T+2}, v{T+2} row_half_mirror {FULL}")
    e(f"v_sub_f32 v{T}, v{T}, v{T+2}")
    e(f"v_mul_f32 v{T}, 0x{LOG2E:x}, v{T}")
    e(f"v_exp_f32 v{T}, v{T}")
    e("s_nop 0")
    e(f"v_mul_f32 v{T+1}, v{T}, v{T+1}")
    e("s_nop 1")
    g.dpp("v_add_f32", [T + 1], "quad_perm:[1,0,3,2]")
    g.dpp("v_add_f32", [T + 1], "quad_perm:[2,3,0,1]")
    g.dpp("v_add_f32", [T + 1], "row_half_mirror", tail=False)
    e(f"v_rcp_f32 v{T+3}, v{T+1}")
    e(f"v_log_f32 v{T+1}, v{T+1}")
    e(f"v_mul_f32 v{T}, v{T}, v{T+3}")
    e(f"v_mov_b32 v{T+7}, v{V_TAG}")
    for w in range(8):
        e(f"v_readlane_b32 s{S_G+w}, v{T}, {w}")
    e(f"v_mov_b32 v{T+6}, 0x{LOG2E:x}")
    e(f"v_fma_f32 v{T+6}, v{T+2}, v{T+6}, v{T+1}")
    e("s_waitcnt lgkmcnt(0)")
    e(f"v_mul_f32 v{T+4}, s{S_G}, v{T+8}")
    e(f"v_mul_f32 v{T+5}, s{S_G}, v{T+9}")
    for w in range(1, 8):
        e(f"v_fmac_f32 v{T+4}, s{S_G+w}, v{T+8+2*w}")
        e(f"v_fmac_f32 v{T+5}, s{S_G+w}, v{T+9+2*w}")
    e(f"buffer_store_dwordx4 {vr(T+4, 4)}, v10, {srd(R_WS)}, s{S_D} offen sc1")
    lab(l1)
    g.stamp(6)
    e(f"s_cmp_ge_u32 s{S_J}, 14")
    e("s_cbranch_scc1 L_end")
    V_ROW, V_CG, V_O1, V_GO = 1, 2, 3, 5
    V_W1, V_W3, V_W2 = 16, 24, 32
    V_W1T, V_W3T, V_W2T = 40, 48, 56
    V_CBG, V_SBG, V_XG = 64, 68, 72
    V_CBF, V_SBF, V_XF = 76, 80, 84
    V_ACC = 96
    V_LFW, V_LFR, V_LNW, V_LNR, V_LHW, V_LHR, V_O6 = 6, 7, 10, 11, 12, 13, 14
    e(f"s_mul_i32 s{S_JI}, s{S_XCD}, 14")
    e(f"s_add_u32 s{S_JI}, s{S_JI}, s{S_J}")
    g.rowb(V_ROW, V_CG, 8)
    e(f"v_mul_u32_u24 v{V_O1}, 3584, v{V_ROW}")
    e(f"v_lshl_add_u32 v{V_O1}, v{V_CG}, 3, v{V_O1}")
    e(f"s_lshl_b32 s{S_A}, s{S_JI}, 5")
    e(f"s_add_u32 s{S_B}, s{S_A}, 7168")
    for R, V in ((R_W1, V_W1), (R_W3, V_W3)):
        for j in range(4):
            e(f"buffer_load_dwordx2 {vr(V+2*j, 2)}, v{V_O1}, {srd(R)}, s{(S_A, S_B)[j>>1]} offen offset:{3584*(j&1)}")
    e(f"v_lshrrev_b32 v9, 4, v0")
    e(f"v_and_b32 v8, 15, v0")
    e(f"v_lshlrev_b32 v15, 12, v9")
    e(f"v_lshl_add_u32 v15, v8, 3, v15")
    e(f"s_lshl_b32 s{S_A}, s{S_JI}, 14")
    e(f"s_lshl_b32 s{S_B}, s{S_WAVE}, 7")
    e(f"s_add_u32 s{S_A}, s{S_A}, s{S_B}")
    for j in range(4):
        e(f"buffer_load_dwordx2 {vr(V_W2+2*j, 2)}, v15, {srd(R_W2)}, s{S_A} offen offset:{1024*j}{NT}")
    e(f"v_add_lshl_u32 v{V_GO}, v{V_ROW}, v{V_CG}, 4")
    e(f"s_and_b32 s{S_T}, s{S_XCD}, 3")
    e(f"s_mul_i32 s{S_T}, s{S_T}, 0x{REP:x}")
    e(f"v_add_u32 v{V_GO}, s{S_T}, v{V_GO}")
    e(f"v_add_u32 v{V_O1}, 0x{CB:x}, v{V_GO}")
    e(f"v_add_u32 v15, 0x{SB:x}, v{V_GO}")
    e(f"v_add_u32 v{V_GO}, 0x{H5:x}, v{V_GO}")
    c("LDS: partial write LF + p*528 + b*128 ; read pp*528 + Q*16 ; LN write (b*8+w)*8, read b*64")
    e(f"s_lshl_b32 s{S_T}, s{S_WAVE}, 2")
    e(f"v_add_u32 v{V_LFR}, s{S_T}, v9")
    e(f"v_mul_u32_u24 v{V_LFW}, 528, v{V_LFR}")
    e(f"v_lshl_add_u32 v{V_LFW}, v{V_CG}, 7, v{V_LFW}")
    e(f"v_add_u32 v{V_LFW}, {LF}, v{V_LFW}")
    e(f"v_lshlrev_b32 v{V_LFR}, 4, v{V_LFR}")
    e(f"s_movk_i32 s{S_T}, 528")
    e(f"v_mad_u32_u24 v{V_LFR}, v8, s{S_T}, v{V_LFR}")
    e(f"v_lshlrev_b32 v{V_LNR}, 6, v{V_CG}")
    e(f"s_lshl_b32 s{S_T}, s{S_WAVE}, 3")
    e(f"v_add_u32 v{V_LNW}, s{S_T}, v{V_LNR}")
    c("hh write: (w>>1)*32 + (2*(w&1) + (l>>5))*8 + ((l>>2)&3)*2 = w*16 + (l>>5)*8 + bank*2 ; read: ((l&15)>>2)*32 + (l>>4)*8")
    e(f"v_lshrrev_b32 v{V_LHW}, 5, v0")
    e(f"v_lshlrev_b32 v{V_LHW}, 3, v{V_LHW}")
    e(f"v_bfe_u32 v{V_LHR}, v0, 2, 2")
    e(f"v_lshl_add_u32 v{V_LHW}, v{V_LHR}, 1, v{V_LHW}")
    e(f"s_lshl_b32 s{S_T}, s{S_WAVE}, 4")
    e(f"v_add_u32 v{V_LHW}, s{S_T}, v{V_LHW}")
    e(f"v_lshlrev_b32 v{V_LHR}, 5, v{V_LHR}")
    e(f"v_lshl_add_u32 v{V_LHR}, v9, 3, v{V_LHR}")
    c("H6 addr = H6 + ((16w + n)*112 + fb)*128 + mg*16")
    e(f"s_lshl_b32 s{S_T}, s{S_WAVE}, 4")
    e(f"v_add_u32 v{V_O6}, s{S_T}, v8")
    e(f"v_mul_u32_u24 v{V_O6}, 14336, v{V_O6}")
    e(f"v_lshl_add_u32 v{V_O6}, v9, 4, v{V_O6}")
    e(f"s_lshl_b32 s{S_D}, s{S_JI}, 7")
    e(f"s_add_u32 s{S_D}, s{S_D}, 0x{H6:x}")
    g.poll([(V_CBG, 4, V_O1, 0), (V_SBG, 4, 15, 0)], [V_CBG + 3, V_SBG + 3], V_TAG)
    g.stamp(7)
    g.poll_loads([(V_XG, 4, V_GO, 0)])
    g.transpose(V_W1, 4, 2, V_W1T)
    g.transpose(V_W3, 4, 2, V_W3T)
    g.transpose(V_W2, 4, 2, V_W2T)
    g.unpack(V_CBG, V_CBF, V_CBF + 1)
    g.unpack(V_CBG + 1, V_CBF + 2, V_CBF + 3)
    g.unpack(V_SBG, V_SBF, V_SBF + 1)
    g.unpack(V_SBG + 1, V_SBF + 2, V_SBF + 3)
    g.poll([(V_XG, 4, V_GO, 0)], [V_XG + 3], V_TAG, first_issued=True)
    g.stamp(8)
    g.unpack(V_XG, V_XF, V_XF + 1)
    g.unpack(V_XG + 1, V_XF + 2, V_XF + 3)
    e(f"v_pk_add_f32 {vr(T+2, 2)}, {vr(V_XF, 2)}, {vr(V_XF+2, 2)}")
    e(f"v_pk_mul_f32 {vr(T+4, 2)}, {vr(V_XF, 2)}, {vr(V_XF, 2)}")
    e(f"v_pk_fma_f32 {vr(T+4, 2)}, {vr(V_XF+2, 2)}, {vr(V_XF+2, 2)}, {vr(T+4, 2)}")
    e(f"v_add_f32 v{T}, v{T+2}, v{T+3}")
    e(f"v_add_f32 v{T+1}, v{T+4}, v{T+5}")
    e("s_nop 1")
    g.dpp("v_add_f32", [T, T + 1], "row_ror:4")
    g.dpp("v_add_f32", [T, T + 1], "row_ror:8", tail=False)
    g.swap_reduce("v_add_f32", [T, T + 1], [T + 2, T + 3], 16)
    g.swap_reduce("v_add_f32", [T, T + 1], [T + 2, T + 3], 32)
    e(f"ds_write_b64 v{V_LNW}, {vr(T, 2)} offset:{LN}")
    g.barrier()
    for k in range(4):
        e(f"ds_read_b128 {vr(T+4*k, 4)}, v{V_LNR} offset:{LN+16*k}")
    e("s_waitcnt lgkmcnt(0)")
    e(f"v_pk_add_f32 {vr(T, 2)}, {vr(T, 2)}, {vr(T+2, 2)}")
    e(f"v_pk_add_f32 {vr(T+4, 2)}, {vr(T+4, 2)}, {vr(T+6, 2)}")
    e(f"v_pk_add_f32 {vr(T+8, 2)}, {vr(T+8, 2)}, {vr(T+10, 2)}")
    e(f"v_pk_add_f32 {vr(T+12, 2)}, {vr(T+12, 2)}, {vr(T+14, 2)}")
    e(f"v_pk_add_f32 {vr(T, 2)}, {vr(T, 2)}, {vr(T+4, 2)}")
    e(f"v_pk_add_f32 {vr(T+8, 2)}, {vr(T+8, 2)}, {vr(T+12, 2)}")
    e(f"v_pk_add_f32 {vr(T, 2)}, {vr(T, 2)}, {vr(T+8, 2)}")
    e(f"v_mul_f32 v{T}, 0x{INV512:x}, v{T}")
    e(f"v_mul_f32 v{T+1}, 0x{INV512:x}, v{T+1}")
    e(f"v_fma_f32 v{T+1}, -v{T}, v{T}, v{T+1}")
    e(f"v_max_f32 v{T+1}, 0, v{T+1}")
    g.ln_finish(T, T + 1, T + 2)
    for k in range(4):
        e(f"v_sub_f32 v{V_XF+k}, v{V_XF+k}, v{T}")
    g.round2(V_XF, V_XF + 1, T + 2)
    g.round2(V_XF + 2, V_XF + 3, T + 3)
    for k in range(4):
        e(f"v_mul_f32 v{V_XF+k}, v{V_XF+k}, v{T+1}")
    g.round2(V_XF, V_XF + 1, T + 2)
    g.round2(V_XF + 2, V_XF + 3, T + 3)
    for k in range(4):
        e(f"v_mul_f32 v{V_XF+k}, v{V_XF+k}, v{V_CBF+k}")
    g.round2(V_XF, V_XF + 1, T + 2)
    g.round2(V_XF + 2, V_XF + 3, T + 3)
    for k in range(4):
        e(f"v_add_f32 v{V_XF+k}, v{V_XF+k}, v{V_SBF+k}")
    e(f"v_cvt_pk_bf16_f32 v{T+2}, v{V_XF}, v{V_XF+1}")
    e(f"v_cvt_pk_bf16_f32 v{T+3}, v{V_XF+2}, v{V_XF+3}")
    e("s_nop 1")
    for mat, WT in enumerate((V_W1T, V_W3T)):
        for el in range(4):
            e(f"v_mfma_f32_16x16x16_bf16 {vr(V_ACC+16*mat+4*el, 4)}, {vr(WT+2*el, 2)}, {vr(T+2, 2)}, 0")
    g.exec_mask(USEFUL)
    c("LDS layout [p][b][fq=cg][mat][e]")
    for mat in range(2):
        for el in (0, 2):
            if mat == 1 and el == 2:
                e("s_nop 0")
            for cg in range(4):
                a = V_ACC + 16 * mat + 4 * el + cg
                e(f"ds_write2_b32 v{V_LFW}, v{a}, v{a+4} offset0:{8*cg+4*mat+el} offset1:{8*cg+4*mat+el+1}")
    g.exec_mask(-1)
    g.barrier()
    g.stamp(9)
    e(f"ds_read_b128 {vr(T+2, 4)}, v{V_LFR} offset:{LF}")
    e(f"ds_read_b128 {vr(T+6, 4)}, v{V_LFR} offset:{LF+16*528}")
    e("s_waitcnt lgkmcnt(0)")
    e(f"v_pk_add_f32 {vr(T+2, 2)}, {vr(T+2, 2)}, {vr(T+6, 2)}")
    e(f"v_pk_add_f32 {vr(T+4, 2)}, {vr(T+4, 2)}, {vr(T+8, 2)}")
    g.scatter4([[T + 2, T + 3, T + 4, T + 5]], [T + 6, T + 7], [T])
    g.round1(T)
    e(f"v_mov_b32 v{T+1}, v{T}")
    e("s_nop 1")
    e(f"v_permlane16_swap_b32 v{T}, v{T+1}")
    e(f"v_mul_f32 v{T+2}, 0x{LOG2E:x}, v{T}")
    e(f"v_exp_f32 v{T+2}, -v{T+2}")
    e("s_nop 0")
    e(f"v_add_f32 v{T+2}, 1.0, v{T+2}")
    e(f"v_rcp_f32 v{T+2}, v{T+2}")
    e("s_nop 0")
    e(f"v_mul_f32 v{T}, v{T}, v{T+2}")
    g.round1(T)
    e(f"v_mul_f32 v{T}, v{T}, v{T+1}")
    e(f"v_cvt_pk_bf16_f32 v{T}, v{T}, v{T}")
    e(f"ds_write_b16 v{V_LHW}, v{T} offset:{LH}")
    g.barrier()
    e(f"ds_read_b64 {vr(T, 2)}, v{V_LHR} offset:{LH}")
    e("s_waitcnt lgkmcnt(0)")
    for el in range(4):
        e(f"v_mfma_f32_16x16x16_bf16 {vr(V_ACC+4*el, 4)}, {vr(T, 2)}, {vr(V_W2T+2*el, 2)}, 0")
    e("s_nop 5")
    for h in range(2):
        a = V_ACC + 8 * h
        e(f"v_mov_b32 v{a+1}, v{V_TAG}")
        e(f"v_mov_b32 v{a+3}, v{V_TAG}")
        e(f"v_mov_b32 v{a+2}, v{a+4}")
        e(f"buffer_store_dwordx4 {vr(a, 4)}, v{V_O6}, {srd(R_WS)}, s{S_D} offen offset:{64*h} sc1")
    g.stamp(10)
    e("s_branch L_end")
    return lds_end, 164


def build(opt):
    g = Gen(opt)
    e, lab = g.e, g.lab
    if opt.stamps:
        for i in range(1, NSTAMP):
            e(f"s_mov_b64 s[{S_ST+2*i}:{S_ST+2*i+1}], 0")
    g.stamp(0)
    e("s_cmp_ge_u32 s2, 256")
    e("s_cbranch_scc1 L_exit")
    for r, slot in ((R_WS, 13), (R_C, 9), (R_WM, 10), (R_K, 1), (R_V, 2), (R_WQ, 3), (R_X, 0), (R_WO, 4),
                    (R_W1, 6), (R_W3, 7), (R_W2, 8), (R_OUT, 11)):
        e(f"s_load_dwordx2 s[{r}:{r+1}], s[0:1], {slot*8}")
    e("v_lshrrev_b32 v1, 6, v0")
    e("v_and_b32 v0, 63, v0")
    e(f"s_and_b32 s{S_XCD}, s2, 7")
    e(f"v_readfirstlane_b32 s{S_WAVE}, v1")
    e(f"s_bfe_u32 s{S_J}, s2, 0x40003")
    e(f"s_mov_b32 s{S_PLO}, 0x05040100")
    e(f"s_mov_b32 s{S_PHI}, 0x07060302")
    e(f"s_mov_b32 s{S_BUDGET}, 0x4000")
    g.mk_srd(R_WS, WS_SIZE)
    g.L.append("@WARM@")
    lab("L_warm_done")
    e("s_mov_b64 exec, -1")
    e("s_cmp_lt_u32 s2, 128")
    e("s_cbranch_scc1 " + ("L_W" if opt.wfirst else "L_A"))
    e("s_branch " + ("L_A" if opt.wfirst else "L_W"))
    g.L.append("@ROLE W@")
    ldsw, vw = role_w(g, opt)
    g.L.append("@ROLE A@")
    ldsa, va = role_a(g, opt)
    g.L.append("@ROLE E@")
    lab("L_end")
    if opt.stamps:
        e("s_waitcnt lgkmcnt(0)")
        g.exec_mask(-1)
        e(f"s_lshl_b32 s{S_T}, s2, 3")
        e(f"s_add_u32 s{S_T}, s{S_T}, s{S_WAVE}")
        e(f"s_lshl_b32 s{S_T}, s{S_T}, 6")
        e(f"s_add_u32 s{S_T}, s{S_T}, 0x{STAMP:x}")
        e(f"v_mov_b32 v1, s{S_T}")
        for i in range(NSTAMP):
            e(f"v_mov_b32 v2, s{S_ST+2*i}")
            e(f"buffer_store_dword v2, v1, {srd(R_WS)}, 0 offen offset:{4*i}")
        e(f"v_mov_b32 v2, s{S_BUDGET}")
        e(f"buffer_store_dword v2, v1, {srd(R_WS)}, 0 offen offset:{4*NSTAMP}")
    lab("L_exit")
    e("s_endpgm")
    return g.L, max(ldsw, ldsa), max(vw, va)


HEADER = open(os.path.join(os.path.dirname(os.path.abspath(__file__)), "header.txt")).read()


def render(lines, lds, nv, warm):
    nva = (nv + 7) // 8 * 8
    out = [HEADER.rstrip("\n"), f"; @launch grid=(256,1,1) block=(512,1,1) lds={lds}",
           '.amdgcn_target "amdgcn-amd-amdhsa--gfx950"', ".text", f".globl {KN}", ".p2align 12",
           f".type {KN},@function", f"{KN}:"]
    for ln in lines:
        if ln == "@WARM@":
            out += warm
        elif ln.startswith("@ROLE"):
            out.append("; " + ln)
        else:
            out.append(ln)
    out += ['.section .rodata,"a"', ".p2align 6", f".amdhsa_kernel {KN}",
            f"  .amdhsa_next_free_vgpr {nva}", "  .amdhsa_next_free_sgpr 102", f"  .amdhsa_accum_offset {nva}",
            "  .amdhsa_group_segment_fixed_size 0", "  .amdhsa_kernarg_size 112", "  .amdhsa_user_sgpr_count 2",
            "  .amdhsa_user_sgpr_kernarg_segment_ptr 1", "  .amdhsa_system_sgpr_workgroup_id_x 1",
            ".end_amdhsa_kernel", ""]
    return "\n".join(out)


def offsets(text):
    open("_g.s", "w").write(text)
    r = subprocess.run(["clang", "-x", "assembler", "-target", "amdgcn-amd-amdhsa", "-mcpu=gfx950",
                        "-c", "_g.s", "-o", "_g.o"], capture_output=True, text=True)
    if r.returncode:
        sys.stderr.write(r.stderr)
        sys.exit(1)
    d = subprocess.run(["llvm-objdump", "-d", "--mcpu=gfx950", "_g.o"], capture_output=True, text=True).stdout
    return [int(m.group(1), 16) for m in re.finditer(r"// ([0-9A-F]{12}):", d)]


def is_instr(ln):
    s = ln.strip()
    return ln.startswith("    ") and not s.startswith(";")


def add_pads(lines, lds, nv, opt):
    if not opt.warm:
        return lines, []
    NW = 8
    def warm_code(padsW, padsA):
        w = ["    s_mov_b64 exec, 0", "    s_cmp_lt_u32 s2, 128",
             "    s_cbranch_scc1 " + ("L_warmW" if opt.wfirst else "L_warmA"),
             ("L_warmA:" if opt.wfirst else "L_warmW:")]
        first, second = (padsA, padsW) if opt.wfirst else (padsW, padsA)
        for k in range(opt.maxpads):
            w += [f"    s_cmp_eq_u32 s{S_WAVE}, {k}", f"    s_cbranch_scc1 {first[k] if k < len(first) else 'L_warm_done'}"]
        w += ["    s_branch L_warm_done", ("L_warmW:" if opt.wfirst else "L_warmA:")]
        for k in range(opt.maxpads):
            w += [f"    s_cmp_eq_u32 s{S_WAVE}, {k}", f"    s_cbranch_scc1 {second[k] if k < len(second) else 'L_warm_done'}"]
        return w
    lines = list(lines)
    npad = 0
    targets = [p * 4096 + o for p in range(8) for o in (0, 1088, 2176, 3264)][1:]
    pads = {"W": [], "A": [], "E": []}
    for tgt in targets:
        offs = offsets(render(lines, lds, nv, warm_code([], [])))
        if tgt >= offs[-1]:
            break
        k = 0
        role = None
        pos = None
        for li, ln in enumerate(lines):
            if ln == "@WARM@":
                k += sum(1 for x in warm_code([], []) if is_instr(x))
                continue
            if ln.startswith("@ROLE"):
                role = ln[6]
                continue
            if is_instr(ln):
                if offs[k] >= tgt:
                    pos = li
                    break
                k += 1
        assert offs[k] < tgt + 60, "no instruction boundary in window line"
        assert role is not None, "prologue longer than first window"
        name = f"L_pad_{npad}"
        npad += 1
        lines[pos:pos] = [name + ":", "    s_cbranch_execz L_warm_done"]
        pads[role].append(name)
    pw = pads["W"]
    pa = ([pads["W"][-1]] if pads["W"] else []) + pads["A"]
    assert len(pw) <= opt.maxpads and len(pa) <= opt.maxpads, (len(pw), len(pa))
    return lines, warm_code(pw, pa)


def main():
    ap = argparse.ArgumentParser()
    ap.add_argument("-o", default="adaLN_cond__sliding_block_cached__glu_gated_swiglu__decode.s")
    ap.add_argument("--stamps", action="store_true")
    ap.add_argument("--nt", type=int, default=1)
    ap.add_argument("--wqflag", default="")
    ap.add_argument("--kflag", default=" nt")
    ap.add_argument("--wfirst", type=int, default=1)
    ap.add_argument("--warm", type=int, default=1)
    ap.add_argument("--maxpads", type=int, default=6)
    opt = ap.parse_args()
    opt.wqflag = (" " + opt.wqflag.strip()) if opt.wqflag.strip() else ""
    opt.kflag = (" " + opt.kflag.strip()) if opt.kflag.strip() else ""
    lines, lds, nv = build(opt)
    lines, warm = add_pads(lines, lds, nv, opt)
    text = render(lines, lds, nv, warm)
    offs = offsets(text)
    open(opt.o, "w").write(text)
    sys.stderr.write(f"code bytes {offs[-1]+4}, lds {lds}, vgpr {nv}\n")


main()
```

```python
import sys, subprocess, re, os, argparse

KN = "adaLN_cond__sliding_block_cached__glu_gated_swiglu__decode_kernel"

REP = 0x2100
H1 = 0x20000
SB = 0x40000
CB = 0x60000
GA = 0x80000
GB = 0xA0000
H5 = 0xC0000
H2 = 0xE0000
H3 = 0x100000
H4 = 0x180000
H6 = 0x200000
STAMP = 0x400000
WS_SIZE = 0x480000
NSTAMP = 13

S_WAVE, S_TAG, S_XCD, S_J, S_T = 3, 4, 5, 6, 7
R_WS, R_X, R_K, R_V, R_WQ, R_WO, R_W1, R_W3, R_W2, R_C, R_WM, R_OUT = 8, 12, 16, 20, 24, 28, 32, 36, 40, 44, 48, 52
S_PLO, S_PHI, S_BUDGET = 56, 57, 58
S_A, S_B, S_C, S_D = 59, 60, 61, 62
S_JI = 63
S_G = 64
S_ST = 72
LOG2E = 0x3FB8AA3B
SCALE = 0x3DB504F3
EPS = 0x3727C5AC
INV512 = 0x3B000000
USEFUL = 0xF0000F0000F0000F
FULL = "row_mask:0xf bank_mask:0xf"


def srd(r):
    return f"s[{r}:{r+3}]"


def vr(a, n):
    return f"v[{a}:{a+n-1}]"


class Gen:
    def __init__(self, opt):
        self.L = []
        self.opt = opt
        self.uid = 0
        self.vtmp = None

    def e(self, s):
        self.L.append("    " + s)

    def lab(self, l):
        self.L.append(l + ":")

    def c(self, s):
        self.L.append("    ; " + s)

    def new(self, p):
        self.uid += 1
        return f"L_{p}_{self.uid}"

    def stamp(self, idx):
        if self.opt.stamps:
            assert idx < NSTAMP
            self.e(f"s_memtime s[{S_ST+2*idx}:{S_ST+2*idx+1}]")

    def exec_mask(self, m):
        if m == -1:
            self.e("s_mov_b64 exec, -1")
        else:
            lo, hi = m & 0xFFFFFFFF, m >> 32
            self.e(f"s_mov_b32 exec_lo, 0x{lo:x}")
            self.e(f"s_mov_b32 exec_hi, 0x{hi:x}")

    def only_wave(self, w, lab):
        self.e(f"s_cmp_lg_u32 s{S_WAVE}, {w}")
        self.e(f"s_cbranch_scc1 {lab}")

    def poll_loads(self, loads):
        for (d, n, vo, imm) in loads:
            op = {2: "dwordx2", 4: "dwordx4"}[n]
            self.e(f"buffer_load_{op} {vr(d, n)}, v{vo}, {srd(R_WS)}, 0 offen offset:{imm} sc1")

    def poll(self, loads, tags, vtag, first_issued=False):
        top = self.new("poll")
        chk = self.new("chk")
        if first_issued:
            self.e(f"s_branch {chk}")
        self.lab(top)
        self.poll_loads(loads)
        self.e(f"s_sub_u32 s{S_BUDGET}, s{S_BUDGET}, 1")
        self.e("s_cbranch_scc1 L_end")
        self.lab(chk)
        self.e("s_waitcnt vmcnt(0)")
        if len(tags) == 1:
            self.e(f"v_cmp_ne_u32 vcc, v{tags[0]}, v{vtag}")
        else:
            t = self.vtmp
            self.e(f"v_xor_b32 v{t}, v{tags[0]}, v{vtag}")
            for g in tags[1:]:
                self.e(f"v_xor_b32 v{t+1}, v{g}, v{vtag}")
                self.e(f"v_or_b32 v{t}, v{t}, v{t+1}")
            self.e(f"v_cmp_ne_u32 vcc, 0, v{t}")
        self.e(f"s_cbranch_vccnz {top}")

    def prepoll(self, load, tag, vtag, mask):
        self.exec_mask(mask)
        self.poll([load], [tag], vtag)
        self.exec_mask(-1)

    def gate(self, load, tag, vtag, mask, wave=0):
        if not self.opt.gate:
            return
        l = self.new("gate")
        self.only_wave(wave, l)
        self.prepoll(load, tag, vtag, mask)
        self.lab(l)
        self.e("s_barrier")

    def wave_reduce(self, op, vals, tmps):
        self.row_reduce(op, vals)
        self.swap_reduce(op, vals, tmps, 16)
        self.swap_reduce(op, vals, tmps, 32)

    def silu(self, xs, ts, us):
        e = self.e
        n = len(xs)
        for x, t in zip(xs, ts):
            e(f"v_mul_f32 v{t}, 0x{LOG2E:x}, v{x}")
        for t in ts:
            e(f"v_exp_f32 v{t}, -v{t}")
        if n == 1:
            e("s_nop 0")
        for t in ts:
            e(f"v_add_f32 v{t}, 1.0, v{t}")
        for t, u in zip(ts, us):
            e(f"v_rcp_f32 v{u}, v{t}")
        if n == 1:
            e("s_nop 0")
        for t in ts:
            e(f"v_min_f32 v{t}, 0x7f000000, v{t}")
        for x, t, u in zip(xs, ts, us):
            e(f"v_mul_f32 v{u+0}, v{u}, v{x}") if False else None
        for x, t, u in zip(xs, ts, us):
            e(f"v_mul_f32 v{self.vq}, v{x}, v{u}")
            e(f"v_fma_f32 v{t}, -v{self.vq}, v{t}, v{x}")
            e(f"v_fma_f32 v{x}, v{t}, v{u}, v{self.vq}")

    def dpp(self, op, vals, ctrl, tail=True):
        for v in vals:
            self.e(f"{op}_dpp v{v}, v{v}, v{v} {ctrl} {FULL}")
        if tail and len(vals) < 3:
            self.e(f"s_nop {2-len(vals)}")

    def row_reduce(self, op, vals):
        self.e("s_nop 1")
        for r in (8, 4, 2, 1):
            self.dpp(op, vals, f"row_ror:{r}", tail=(r != 1))

    def scatter4(self, groups, tmps, outs):
        self.e("s_nop 1")
        for gi, g in enumerate(groups):
            t0, t1 = tmps[2 * gi], tmps[2 * gi + 1]
            self.e(f"v_add_f32_dpp v{t0}, v{g[0]}, v{g[0]} row_ror:8 row_mask:0xf bank_mask:0x3")
            self.e(f"v_add_f32_dpp v{t1}, v{g[1]}, v{g[1]} row_ror:8 row_mask:0xf bank_mask:0x3")
            self.e(f"v_add_f32_dpp v{t0}, v{g[2]}, v{g[2]} row_ror:8 row_mask:0xf bank_mask:0xc")
            self.e(f"v_add_f32_dpp v{t1}, v{g[3]}, v{g[3]} row_ror:8 row_mask:0xf bank_mask:0xc")
        if len(groups) == 1:
            self.e("s_nop 0")
        for gi, g in enumerate(groups):
            t0, t1 = tmps[2 * gi], tmps[2 * gi + 1]
            self.e(f"v_add_f32_dpp v{outs[gi]}, v{t0}, v{t0} row_shl:4 row_mask:0xf bank_mask:0x5")
            self.e(f"v_add_f32_dpp v{outs[gi]}, v{t1}, v{t1} row_shr:4 row_mask:0xf bank_mask:0xa")
        self.e("s_nop 1")
        self.dpp("v_add_f32", outs, "quad_perm:[1,0,3,2]")
        self.dpp("v_add_f32", outs, "quad_perm:[2,3,0,1]", tail=False)

    def swap_reduce(self, op, vals, tmps, which):
        for v, t in zip(vals, tmps):
            self.e(f"v_mov_b32 v{t}, v{v}")
        self.e("s_nop 1")
        for v, t in zip(vals, tmps):
            self.e(f"v_permlane{which}_swap_b32 v{v}, v{t}")
        for v, t in zip(vals, tmps):
            self.e(f"{op} v{v}, v{v}, v{t}")

    def round2(self, a, b, t):
        self.e(f"v_cvt_pk_bf16_f32 v{t}, v{a}, v{b}")
        self.e(f"v_lshlrev_b32 v{a}, 16, v{t}")
        self.e(f"v_and_b32 v{b}, 0xffff0000, v{t}")

    def round1(self, a):
        self.e(f"v_cvt_pk_bf16_f32 v{a}, v{a}, v{a}")
        self.e(f"v_lshlrev_b32 v{a}, 16, v{a}")

    def unpack(self, src, a, b):
        self.e(f"v_lshlrev_b32 v{a}, 16, v{src}")
        self.e(f"v_and_b32 v{b}, 0xffff0000, v{src}")

    def transpose_pair(self, src, q, nrows, ndw, dst):
        for d in range(ndw):
            r0 = src + (2 * q) * ndw + d
            r1 = src + (2 * q + 1) * ndw + d
            self.e(f"v_perm_b32 v{dst + (2*d)*(nrows//2) + q}, v{r1}, v{r0}, s{S_PLO}")
            self.e(f"v_perm_b32 v{dst + (2*d+1)*(nrows//2) + q}, v{r1}, v{r0}, s{S_PHI}")

    def transpose(self, src, nrows, ndw, dst):
        for q in range(nrows // 2):
            self.transpose_pair(src, q, nrows, ndw, dst)

    def barrier(self):
        self.e("s_waitcnt lgkmcnt(0)")
        self.e("s_barrier")

    def mk_srd(self, r, size):
        self.e(f"s_mov_b32 s{r+2}, 0x{size:x}")
        self.e(f"s_mov_b32 s{r+3}, 0x20000")

    def make_tag(self, vtag):
        self.e(f"s_mul_i32 s{S_TAG}, s{S_TAG}, 0x9E3779B1")
        self.e(f"s_add_u32 s{S_TAG}, s{S_TAG}, 0x7F4A7C15")
        self.e(f"v_mov_b32 v{vtag}, s{S_TAG}")

    def rowb(self, vrow, vcg, t):
        e = self.e
        e(f"v_bfe_u32 v{vrow}, v0, 2, 2")
        e(f"v_lshlrev_b32 v{vrow}, 4, v{vrow}")
        e(f"v_lshrrev_b32 v{t}, 4, v0")
        e(f"v_lshl_add_u32 v{vrow}, v{t}, 2, v{vrow}")
        e(f"s_lshl_b32 s{S_T}, s{S_WAVE}, 6")
        e(f"v_add_u32 v{vrow}, s{S_T}, v{vrow}")
        e(f"v_and_b32 v{vcg}, 3, v0")

    def ln_finish(self, m, v, t):
        e = self.e
        self.round2(m, v, t)
        e(f"v_add_f32 v{v}, 0x{EPS:x}, v{v}")
        self.round1(v)
        e(f"v_sqrt_f32 v{v}, v{v}")
        e("s_nop 0")
        self.round1(v)
        e(f"v_rcp_f32 v{v}, v{v}")


def role_w(g, opt):
    e, lab, c = g.e, g.lab, g.c
    NT = " nt" if opt.nt else ""
    lab("L_W")
    if opt.only == "A":
        e("s_waitcnt lgkmcnt(0)")
        e("s_branch L_end")
    g.vtmp = 8
    V_ROW, V_CG, V_OM, V_OQ, V_GO, V_TAG, V_LP = 1, 2, 3, 4, 5, 6, 7
    V_CIN, V_SIL = 10, 12
    V_LR, V_PA, V_ONE, V_N = 14, 15, 16, 17
    V_X, V_XJ = 18, 22
    V_WQ, V_WQT, V_ACC, V_G = 24, 40, 56, 88
    V_MW, V_MWT = 96, 112
    V_GA, V_GB, V_XR, V_X1 = 128, 130, 132, 134
    T = 136
    g.vq = T + 8
    LM = 0
    LQ = 32 * 528
    LO = LQ + 32 * 528
    LR6 = LO + 8 * 2304
    lds_end = LR6 + 7 * 512
    steps = (f"s{S_A}", f"s{S_B}", f"s{S_C}", f"s{S_D}")

    def mod_soffsets():
        c("mod soffset = c0*1024 + xcd*128 + (i&3)*32 + j*6144 ; c0 = (0,3,2)[i>>2]")
        e(f"s_lshl_b32 s{S_A}, s{S_XCD}, 7")
        e(f"s_and_b32 s{S_T}, s{S_J}, 3")
        e(f"s_lshl_b32 s{S_T}, s{S_T}, 5")
        e(f"s_add_u32 s{S_A}, s{S_A}, s{S_T}")

    def mod_loads():
        e(f"s_add_u32 s{S_B}, s{S_A}, 6144")
        e(f"s_add_u32 s{S_C}, s{S_A}, 12288")
        e(f"s_add_u32 s{S_D}, s{S_A}, 18432")
        for j, so in enumerate(steps):
            e(f"buffer_load_dwordx4 {vr(V_MW+4*j, 4)}, v{V_OM}, {srd(R_WM)}, {so} offen")

    def wq_loads():
        e(f"s_lshl_b32 s{S_A}, s{S_JI}, 6")
        e(f"s_add_u32 s{S_B}, s{S_A}, 8192")
        e(f"s_add_u32 s{S_C}, s{S_A}, 16384")
        e(f"s_add_u32 s{S_D}, s{S_A}, 24576")
        for j, so in enumerate(steps):
            e(f"buffer_load_dwordx4 {vr(V_WQ+4*j, 4)}, v{V_OQ}, {srd(R_WQ)}, {so} offen{opt.wqflag}")

    def do_silu():
        g.unpack(V_CIN, T, T + 1)
        g.unpack(V_CIN + 1, T + 2, T + 3)
        g.silu([T, T + 1, T + 2, T + 3], [T + 4, T + 5, T + 6, T + 7], [T + 9, T + 10, T + 11, T + 12])
        e(f"v_cvt_pk_bf16_f32 v{V_SIL}, v{T}, v{T+1}")
        e(f"v_cvt_pk_bf16_f32 v{V_SIL+1}, v{T+2}, v{T+3}")

    def late_addr():
        c("granule offset (rowb+cg)*16 + (xcd&3)*REP + H1")
        e(f"v_add_lshl_u32 v{V_GO}, v{V_ROW}, v{V_CG}, 4")
        e(f"s_and_b32 s{S_T}, s{S_XCD}, 3")
        e(f"s_mul_i32 s{S_T}, s{S_T}, 0x{REP:x}")
        e(f"s_add_u32 s{S_T}, s{S_T}, 0x{H1:x}")
        e(f"v_add_u32 v{V_GO}, s{S_T}, v{V_GO}")
        c("LDS partial write p*528 + b*128, p = 4w + (l>>4) ; read (l&15)*528 + Q*16, Q = 4w + (l>>4)")
        e(f"v_lshrrev_b32 v8, 4, v0")
        e(f"s_lshl_b32 s{S_T}, s{S_WAVE}, 2")
        e(f"v_add_u32 v8, s{S_T}, v8")
        e(f"v_mul_u32_u24 v{V_LP}, 528, v8")
        e(f"v_lshl_add_u32 v{V_LP}, v{V_CG}, 7, v{V_LP}")
        e(f"v_and_b32 v9, 15, v0")
        e(f"v_mul_u32_u24 v9, 528, v9")
        e(f"v_lshl_add_u32 v{V_LR}, v8, 4, v9")
        c("mod publish addr = (i>>2)*0x40000 + mat*0x20000 + (l&3)*REP + (quad*4+b)*16; quad = 16xcd+4(i&3)+((Q>>1)&3), b = Q>>3")
        e(f"v_bfe_u32 v9, v8, 1, 2")
        e(f"v_lshlrev_b32 v9, 2, v9")
        e(f"v_lshrrev_b32 v{V_PA}, 3, v8")
        e(f"v_add_lshl_u32 v{V_PA}, v{V_PA}, v9, 4")
        e(f"v_and_b32 v9, 1, v8")
        e(f"v_lshl_add_u32 v{V_PA}, v9, 17, v{V_PA}")
        e(f"v_cvt_f32_u32 v{V_ONE}, v9")
        e(f"s_movk_i32 s{S_T}, 0x{REP:x}")
        e(f"v_mad_u32_u24 v{V_PA}, v{V_CG}, s{S_T}, v{V_PA}")
        e(f"s_lshl_b32 s{S_T}, s{S_XCD}, 10")
        e(f"v_add_u32 v{V_PA}, s{S_T}, v{V_PA}")
        e(f"s_and_b32 s{S_T}, s{S_J}, 3")
        e(f"s_lshl_b32 s{S_T}, s{S_T}, 8")
        e(f"v_add_u32 v{V_PA}, s{S_T}, v{V_PA}")
        g.mk_srd(R_WO, 4096 * 1024)
        g.mk_srd(R_OUT, 4096)

    e(f"s_lshl_b32 s{S_JI}, s{S_XCD}, 4")
    e(f"s_add_u32 s{S_JI}, s{S_JI}, s{S_J}")
    g.rowb(V_ROW, V_CG, 8)
    c("mod voffset = rowb*6144 + (cg&1)*16 + (cg>>1)*1024 (x3 for type 2)")
    e(f"v_mul_u32_u24 v{V_OM}, 6144, v{V_ROW}")
    e(f"v_lshrrev_b32 v8, 1, v{V_CG}")
    e(f"v_lshl_add_u32 v{V_OM}, v8, 10, v{V_OM}")
    e(f"v_and_b32 v8, 1, v{V_CG}")
    e(f"v_lshl_add_u32 v{V_OM}, v8, 4, v{V_OM}")
    c("wq voffset = rowb*8192 + cg*16")
    e(f"v_lshlrev_b32 v{V_OQ}, 13, v{V_ROW}")
    e(f"v_lshl_add_u32 v{V_OQ}, v{V_CG}, 4, v{V_OQ}")
    c("c offset = cg*1024 + rowb*2")
    e(f"v_lshlrev_b32 v7, 1, v{V_ROW}")
    e(f"v_lshl_add_u32 v7, v{V_CG}, 10, v7")
    g.mk_srd(R_C, 4096)
    g.mk_srd(R_WM, 512 * 6144)
    g.mk_srd(R_WQ, 512 * 8192)
    g.mk_srd(R_X, 4096)
    mod_soffsets()
    e(f"s_cmp_lt_u32 s{S_J}, 4")
    e("s_cbranch_scc0 L_W_not0")
    c("---- type 0: sa/ca strip first.  x row b = w>>1: l*16 ; xJ: col = 64xcd+16(i&3)+4*(2(w&1)+(l>>5))+bank")
    e(f"v_lshlrev_b32 v8, 4, v0")
    e(f"s_lshr_b32 s{S_T}, s{S_WAVE}, 1")
    e(f"s_lshl_b32 s{S_G}, s{S_T}, 10")
    e(f"v_lshrrev_b32 v9, 5, v0")
    e(f"v_lshlrev_b32 v9, 3, v9")
    e(f"v_bfe_u32 v10, v0, 2, 2")
    e(f"v_lshl_add_u32 v9, v10, 1, v9")
    e(f"s_and_b32 s{S_T}, s{S_WAVE}, 1")
    e(f"s_lshl_b32 s{S_T}, s{S_T}, 4")
    e(f"s_add_u32 s{S_T}, s{S_T}, s{S_A}")
    e(f"s_add_u32 s{S_G+1}, s{S_T}, s{S_G}")
    e("s_waitcnt lgkmcnt(0)")
    g.stamp(1)
    e(f"buffer_load_dwordx2 {vr(V_CIN, 2)}, v7, {srd(R_C)}, 0 offen")
    e(f"buffer_load_dwordx4 {vr(V_X, 4)}, v8, {srd(R_X)}, s{S_G} offen")
    e(f"buffer_load_ushort v{V_XJ}, v9, {srd(R_X)}, s{S_G+1} offen")
    mod_loads()
    e(f"s_load_dword s{S_TAG}, s[{R_WS}:{R_WS+1}], 0")
    wq_loads()
    late_addr()
    e("s_waitcnt vmcnt(8)")
    do_silu()
    c("type 0: LN1 for row b = w>>1")
    XF = V_ACC
    for k in range(4):
        g.unpack(V_X + k, XF + 2 * k, XF + 2 * k + 1)
    e(f"v_pk_add_f32 {vr(T, 2)}, {vr(XF, 2)}, {vr(XF+2, 2)}")
    e(f"v_pk_add_f32 {vr(T+2, 2)}, {vr(XF+4, 2)}, {vr(XF+6, 2)}")
    e(f"v_pk_add_f32 {vr(T, 2)}, {vr(T, 2)}, {vr(T+2, 2)}")
    e(f"v_add_f32 v{T}, v{T}, v{T+1}")
    g.wave_reduce("v_add_f32", [T], [T + 1])
    e(f"v_mul_f32 v{T}, 0x{INV512:x}, v{T}")
    for k in range(8):
        e(f"v_sub_f32 v{XF+k}, v{XF+k}, v{T}")
    e(f"v_pk_mul_f32 {vr(T+2, 2)}, {vr(XF, 2)}, {vr(XF, 2)}")
    for k in range(1, 4):
        e(f"v_pk_fma_f32 {vr(T+2, 2)}, {vr(XF+2*k, 2)}, {vr(XF+2*k, 2)}, {vr(T+2, 2)}")
    e(f"v_add_f32 v{T+1}, v{T+2}, v{T+3}")
    g.wave_reduce("v_add_f32", [T + 1], [T + 2])
    e(f"v_mul_f32 v{T+1}, 0x{INV512:x}, v{T+1}")
    g.ln_finish(T, T + 1, T + 2)
    e(f"v_lshlrev_b32 v{V_XJ}, 16, v{V_XJ}")
    e(f"v_sub_f32 v{V_N}, v{V_XJ}, v{T}")
    g.round1(V_N)
    e(f"v_mul_f32 v{V_N}, v{V_N}, v{T+1}")
    g.round1(V_N)
    e("s_waitcnt lgkmcnt(0)")
    g.make_tag(V_TAG)
    e("s_waitcnt vmcnt(4)")
    g.stamp(2)
    g.transpose(V_MW, 4, 4, V_MWT)
    e("s_branch L_W_M")
    lab("L_W_not0")
    e("s_waitcnt lgkmcnt(0)")
    g.stamp(1)
    wq_loads()
    e(f"buffer_load_dwordx2 {vr(V_CIN, 2)}, v7, {srd(R_C)}, 0 offen")
    e(f"s_load_dword s{S_TAG}, s[{R_WS}:{R_WS+1}], 0")
    late_addr()
    e("s_waitcnt vmcnt(0) lgkmcnt(0)")
    g.make_tag(V_TAG)
    do_silu()
    lab("L_W_B")
    e("s_waitcnt vmcnt(0)")
    g.stamp(4)
    g.transpose(V_WQ, 4, 4, V_WQT)
    c("H2 addr = ((xcd*4 + (Q>>3))*128 + i*8 + (Q&7))*16")
    e(f"v_lshrrev_b32 v10, 4, v0")
    e(f"s_lshl_b32 s{S_T}, s{S_WAVE}, 2")
    e(f"v_add_u32 v10, s{S_T}, v10")
    e(f"v_lshrrev_b32 v11, 3, v10")
    e(f"v_lshlrev_b32 v11, 7, v11")
    e(f"v_and_b32 v10, 7, v10")
    e(f"v_add_u32 v11, v11, v10")
    e(f"s_lshl_b32 s{S_T}, s{S_XCD}, 9")
    e(f"s_lshl_b32 s{S_A}, s{S_J}, 3")
    e(f"s_add_u32 s{S_T}, s{S_T}, s{S_A}")
    e(f"v_add_lshl_u32 v11, v11, s{S_T}, 4")
    e(f"s_mov_b32 s{S_A}, 0x{H2:x}")
    e(f"v_add_u32 v10, {LQ}, v{V_LP}")
    e(f"v_mov_b32 v{T+10}, 0")
    e(f"v_mov_b32 v{T+11}, v{V_TAG}")
    g.gate((V_G, 4, V_GO, 0), V_G + 3, V_TAG, 0xF)
    g.poll([(V_G, 4, V_GO, 0)], [V_G + 3], V_TAG)
    g.stamp(5)
    for el in range(8):
        e(f"v_mfma_f32_16x16x16_bf16 {vr(V_ACC+4*el, 4)}, {vr(V_WQT+2*el, 2)}, {vr(V_G, 2)}, 0")
    g.exec_mask(USEFUL)
    for el in range(0, 8, 2):
        for cg in range(4):
            e(f"ds_write2_b32 v10, v{V_ACC+4*el+cg}, v{V_ACC+4*(el+1)+cg} offset0:{8*cg+el} offset1:{8*cg+el+1}")
    g.exec_mask(-1)
    g.barrier()
    e(f"ds_read_b128 {vr(T, 4)}, v{V_LR} offset:{LQ}")
    e(f"ds_read_b128 {vr(T+4, 4)}, v{V_LR} offset:{LQ+16*528}")
    e("s_waitcnt lgkmcnt(0)")
    e(f"v_pk_add_f32 {vr(T, 2)}, {vr(T, 2)}, {vr(T+4, 2)}")
    e(f"v_pk_add_f32 {vr(T+2, 2)}, {vr(T+2, 2)}, {vr(T+6, 2)}")
    g.row_reduce("v_add_f32", list(range(T, T + 4)))
    e(f"v_cvt_pk_bf16_f32 v{T+8}, v{T}, v{T+1}")
    e(f"v_cvt_pk_bf16_f32 v{T+9}, v{T+2}, v{T+3}")
    g.exec_mask(0x0001000100010001)
    e(f"buffer_store_dwordx4 {vr(T+8, 4)}, v11, {srd(R_WS)}, s{S_A} offen sc1")
    g.exec_mask(-1)
    g.stamp(6)
    c("stage 2 loads: wo tile (+ mod strip for types 1,2)")
    V_WO, V_WOT = V_WQ, V_WQT
    V_O3, V_O4, V_LOR, V_LOW = 4, 5, 10, 11
    S_HEAD = S_G
    e(f"s_lshr_b32 s{S_HEAD}, s{S_JI}, 2")
    e(f"s_lshl_b32 s{S_B}, s{S_HEAD}, 7")
    e(f"s_lshl_b32 s{S_C}, s{S_WAVE}, 4")
    e(f"s_add_u32 s{S_B}, s{S_B}, s{S_C}")
    e(f"s_lshl_b32 s{S_B}, s{S_B}, 10")
    e(f"s_and_b32 s{S_C}, s{S_JI}, 3")
    e(f"s_lshl_b32 s{S_D}, s{S_C}, 8")
    e(f"s_add_u32 s{S_B}, s{S_B}, s{S_D}")
    e(f"v_lshrrev_b32 v9, 4, v0")
    e(f"v_lshlrev_b32 v8, 12, v9")
    e(f"v_and_b32 v10, 15, v0")
    e(f"v_lshl_add_u32 v8, v10, 4, v8")
    for j in range(4):
        e(f"buffer_load_dwordx4 {vr(V_WO+4*j, 4)}, v8, {srd(R_WO)}, s{S_B} offen offset:{1024*j}{NT}")
    c("H3 gather offset: H3 + (head*16 + (l&15))*1024 + (8w+2kg)*16")
    e(f"s_lshl_b32 s{S_B}, s{S_HEAD}, 14")
    e(f"s_lshl_b32 s{S_D}, s{S_WAVE}, 7")
    e(f"s_add_u32 s{S_D}, s{S_D}, s{S_B}")
    e(f"s_add_u32 s{S_D}, s{S_D}, 0x{H3:x}")
    e(f"v_lshlrev_b32 v{V_O3}, 10, v10")
    e(f"v_lshl_add_u32 v{V_O3}, v9, 5, v{V_O3}")
    e(f"v_add_u32 v{V_O3}, s{S_D}, v{V_O3}")
    c("wo LDS write addr: LO + w*2304 + piece*144 + b*32")
    e(f"v_mul_u32_u24 v{V_LOW}, 144, v10")
    e(f"v_lshl_add_u32 v{V_LOW}, v9, 5, v{V_LOW}")
    e(f"s_mul_i32 s{S_T}, s{S_WAVE}, 2304")
    e(f"s_add_u32 s{S_T}, s{S_T}, {LO}")
    e(f"v_add_u32 v{V_LOW}, s{S_T}, v{V_LOW}")
    c("reader thread t=64w+l: piece=t>>5, b=(t>>3)&3, c8=t&7 ; H4 off = (red*32+head)*128 + ((c8>>1)&1)*64 + b*16 + (c8&1)*8")
    e(f"s_lshl_b32 s{S_T}, s{S_WAVE}, 1")
    e(f"v_lshrrev_b32 v9, 5, v0")
    e(f"v_add_u32 v9, s{S_T}, v9")
    e(f"v_bfe_u32 v8, v0, 2, 1")
    e(f"v_lshl_add_u32 v8, v9, 1, v8")
    e(f"s_lshl_b32 s{S_T}, s{S_C}, 5")
    e(f"v_add_u32 v8, s{S_T}, v8")
    e(f"v_lshlrev_b32 v{V_O4}, 12, v8")
    e(f"v_bfe_u32 v8, v0, 1, 1")
    e(f"v_lshl_add_u32 v{V_O4}, v8, 6, v{V_O4}")
    e(f"v_bfe_u32 v8, v0, 3, 2")
    e(f"v_lshl_add_u32 v{V_O4}, v8, 4, v{V_O4}")
    e(f"v_and_b32 v8, 1, v0")
    e(f"v_lshl_add_u32 v{V_O4}, v8, 3, v{V_O4}")
    e(f"s_lshl_b32 s{S_T}, s{S_HEAD}, 7")
    e(f"s_add_u32 s{S_T}, s{S_T}, 0x{H4:x}")
    e(f"v_add_u32 v{V_O4}, s{S_T}, v{V_O4}")
    e(f"v_mul_u32_u24 v{V_LOR}, 144, v9")
    e(f"v_and_b32 v8, 31, v0")
    e(f"v_lshl_add_u32 v{V_LOR}, v8, 2, v{V_LOR}")
    e(f"s_sub_u32 s{S_T}, s{S_J}, 4")
    e(f"s_cmp_lt_u32 s{S_T}, 8")
    e("s_cbranch_scc0 L_W_nomod")
    mod_soffsets()
    e(f"s_cmp_lt_u32 s{S_J}, 8")
    e(f"s_cselect_b32 s{S_T}, 1024, 0")
    e(f"s_add_u32 s{S_A}, s{S_A}, s{S_T}")
    e(f"s_add_u32 s{S_A}, s{S_A}, 2048")
    e(f"s_cmp_lt_u32 s{S_J}, 8")
    e(f"s_cselect_b32 s{S_T}, 0, 1024")
    e(f"s_cselect_b32 s{S_G+1}, 1.0, 0")
    e(f"v_and_b32 v8, 2, v{V_CG}")
    e(f"v_mad_u32_u24 v{V_OM}, v8, s{S_T}, v{V_OM}")
    e(f"v_mul_f32 v{V_ONE}, s{S_G+1}, v{V_ONE}")
    mod_loads()
    e("s_waitcnt vmcnt(4)")
    g.transpose(V_WO, 4, 4, V_WOT)
    e("s_waitcnt vmcnt(0)")
    g.transpose(V_MW, 4, 4, V_MWT)
    lab("L_W_M")
    e("s_nop 1")
    for el in range(8):
        e(f"v_mfma_f32_16x16x16_bf16 {vr(V_ACC+4*el, 4)}, {vr(V_MWT+2*el, 2)}, {vr(V_SIL, 2)}, 0")
    g.exec_mask(USEFUL)
    for el in range(0, 8, 2):
        for cg in range(4):
            o = 16 * (cg & 1) + 8 * (el >> 2) + 4 * (cg >> 1) + (el & 3)
            e(f"ds_write2_b32 v{V_LP}, v{V_ACC+4*el+cg}, v{V_ACC+4*(el+1)+cg} offset0:{o} offset1:{o+1}")
    g.exec_mask(-1)
    g.barrier()
    e(f"ds_read_b128 {vr(T+2, 4)}, v{V_LR} offset:{LM}")
    e(f"ds_read_b128 {vr(T+6, 4)}, v{V_LR} offset:{LM+16*528}")
    e(f"v_mov_b32 v{T+14}, 0")
    e(f"v_mov_b32 v{T+15}, v{V_TAG}")
    e("s_waitcnt lgkmcnt(0)")
    e(f"v_pk_add_f32 {vr(T+2, 2)}, {vr(T+2, 2)}, {vr(T+6, 2)}")
    e(f"v_pk_add_f32 {vr(T+4, 2)}, {vr(T+4, 2)}, {vr(T+8, 2)}")
    g.scatter4([[T + 2, T + 3, T + 4, T + 5]], [T + 6, T + 7], [T])
    g.round1(T)
    e(f"v_add_f32 v{T}, v{V_ONE}, v{T}")
    g.round1(T)
    e(f"s_lshr_b32 s{S_T}, s{S_J}, 2")
    e(f"s_lshl_b32 s{S_T}, s{S_T}, 18")
    g.exec_mask(0x000F000F000F000F)
    e(f"s_cmp_lt_u32 s{S_J}, 4")
    e("s_cbranch_scc0 L_W_M2")
    e("s_mov_b64 exec, -1")
    e(f"v_mov_b32 v{T+1}, v{T}")
    e("s_nop 1")
    e(f"v_permlane16_swap_b32 v{T}, v{T+1}")
    e(f"v_mul_f32 v{T+1}, v{V_N}, v{T+1}")
    g.round1(T + 1)
    e(f"v_add_f32 v{T}, v{T}, v{T+1}")
    g.round1(T)
    g.exec_mask(0x000F0000000F0000)
    lab("L_W_M2")
    e(f"s_mov_b64 s[{S_G+2}:{S_G+3}], exec")
    e("s_mov_b64 exec, -1")
    e(f"v_mov_b32_dpp v{T+2}, v{T} row_shl:4 {FULL}")
    e(f"v_perm_b32 v{T+12}, v{T+2}, v{T}, s{S_PHI}")
    e("s_nop 1")
    e(f"v_mov_b32_dpp v{T+13}, v{T+12} row_shl:8 {FULL}")
    e(f"s_mov_b64 exec, s[{S_G+2}:{S_G+3}]")
    e(f"buffer_store_dwordx4 {vr(T+12, 4)}, v{V_PA}, {srd(R_WS)}, s{S_T} offen sc1")
    e("s_mov_b64 exec, -1")
    g.stamp(3)
    e(f"s_cmp_lt_u32 s{S_J}, 4")
    e("s_cbranch_scc1 L_W_B")
    e("s_branch L_W_C")
    lab("L_W_nomod")
    e("s_waitcnt vmcnt(0)")
    g.transpose(V_WO, 4, 4, V_WOT)
    lab("L_W_C")
    g.stamp(7)
    if opt.only == "W":
        e("s_branch L_end")
    g.gate((V_G, 4, V_O3, 0), V_G + 3, V_TAG, 0x0001000100010001)
    g.poll([(V_G, 4, V_O3, 0), (V_G + 4, 4, V_O3, 16)], [V_G + 3, V_G + 7], V_TAG)
    g.stamp(8)
    e(f"v_max_f32_dpp v{T}, v{V_G+2}, v{V_G+2} quad_perm:[1,0,3,2] {FULL}")
    e("s_nop 1")
    e(f"v_max_f32_dpp v{T}, v{T}, v{T} quad_perm:[2,3,0,1] {FULL}")
    e(f"v_sub_f32 v{T}, v{V_G+2}, v{T}")
    e(f"v_exp_f32 v{T+1}, v{T}")
    e("s_nop 0")
    e(f"v_mul_f32 v{T+2}, v{T+1}, v{V_G}")
    e(f"v_mul_f32 v{T+3}, v{T+1}, v{V_G+1}")
    e(f"v_mul_f32 v{T+4}, v{T+1}, v{V_G+4}")
    e(f"v_mul_f32 v{T+5}, v{T+1}, v{V_G+5}")
    g.dpp("v_add_f32", [T + 1, T + 2, T + 3, T + 4, T + 5], "quad_perm:[1,0,3,2]")
    g.dpp("v_add_f32", [T + 1, T + 2, T + 3, T + 4, T + 5], "quad_perm:[2,3,0,1]")
    e(f"v_rcp_f32 v{T+1}, v{T+1}")
    e("s_nop 0")
    for k in range(4):
        e(f"v_mul_f32 v{T+2+k}, v{T+2+k}, v{T+1}")
    e(f"v_cvt_pk_bf16_f32 v{T+6}, v{T+2}, v{T+3}")
    e(f"v_cvt_pk_bf16_f32 v{T+7}, v{T+4}, v{T+5}")
    e("s_nop 1")
    for el in range(8):
        e(f"v_mfma_f32_16x16x16_bf16 {vr(V_ACC+4*el, 4)}, {vr(T+6, 2)}, {vr(V_WOT+2*el, 2)}, 0")
    e("s_nop 4")
    for el in range(0, 8, 2):
        e(f"ds_write2_b32 v{V_LOW}, v{V_ACC+4*el}, v{V_ACC+4*(el+1)} offset0:{el} offset1:{el+1}")
    g.barrier()
    for w in range(8):
        e(f"ds_read_b32 v{T+w}, v{V_LOR} offset:{LO+2304*w}")
    e("s_waitcnt lgkmcnt(0)")
    e(f"v_pk_add_f32 {vr(T, 2)}, {vr(T, 2)}, {vr(T+2, 2)}")
    e(f"v_pk_add_f32 {vr(T+4, 2)}, {vr(T+4, 2)}, {vr(T+6, 2)}")
    e(f"v_pk_add_f32 {vr(T, 2)}, {vr(T, 2)}, {vr(T+4, 2)}")
    e(f"v_add_f32 v{T}, v{T}, v{T+1}")
    e(f"v_mov_b32 v{T+1}, v{V_TAG}")
    e(f"buffer_store_dwordx2 {vr(T, 2)}, v{V_O4}, {srd(R_WS)}, 0 offen sc1")
    g.stamp(9)
    P = V_ACC

    def final_reduce():
        e("s_nop 1")
        g.dpp("v_add_f32", [T, T + 1], "row_ror:8", tail=False)
        g.swap_reduce("v_add_f32", [T, T + 1], [T + 2, T + 3], 16)
        g.swap_reduce("v_add_f32", [T, T + 1], [T + 2, T + 3], 32)

    def resid(gate, xin):
        g.round2(T, T + 1, T + 2)
        e(f"v_mul_f32 v{T}, v{gate}, v{T}")
        e(f"v_mul_f32 v{T+1}, v{gate+1}, v{T+1}")
        g.round2(T, T + 1, T + 2)
        e(f"v_add_f32 v{T}, v{xin}, v{T}")
        e(f"v_add_f32 v{T+1}, v{xin+1}, v{T+1}")
        e(f"v_cvt_pk_bf16_f32 v{T+4}, v{T}, v{T+1}")

    c("R6 addresses (all waves) ; out/x offset = b*1024 + half*4 (+8*JI)")
    e(f"s_lshl_b32 s{S_A}, s{S_WAVE}, 9")
    e(f"v_lshlrev_b32 v11, 3, v0")
    e(f"v_add_u32 v11, s{S_A}, v11")
    e(f"s_mul_i32 s{S_T}, s{S_JI}, 14336")
    e(f"s_lshl_b32 s{S_A}, s{S_WAVE}, 11")
    e(f"s_add_u32 s{S_T}, s{S_T}, s{S_A}")
    e(f"s_add_u32 s{S_T}, s{S_T}, 0x{H6:x}")
    e(f"v_lshlrev_b32 v4, 4, v0")
    e(f"v_add_u32 v3, s{S_T}, v4")
    e(f"v_lshlrev_b32 v10, 10, v{V_CG}")
    e(f"v_and_b32 v9, 4, v0")
    e(f"v_or_b32 v10, v10, v9")
    e(f"s_lshl_b32 s{S_B}, s{S_JI}, 3")
    c("R4 (wave 0)")
    l7 = g.new("nor4")
    g.only_wave(0, l7)
    e(f"buffer_load_dword v{V_XR}, v10, {srd(R_X)}, s{S_B} offen")
    e(f"s_lshl_b32 s{S_T}, s{S_JI}, 12")
    e(f"s_add_u32 s{S_T}, s{S_T}, 0x{H4:x}")
    e(f"v_add_u32 v4, s{S_T}, v4")
    e(f"v_lshrrev_b32 v5, 3, v0")
    e(f"v_mul_u32_u24 v5, 0x{REP:x}, v5")
    e(f"v_lshl_add_u32 v5, v{V_CG}, 4, v5")
    e(f"s_lshl_b32 s{S_A}, s{S_JI}, 6")
    e(f"v_lshlrev_b32 v7, 4, v{V_CG}")
    e(f"v_add_u32 v7, s{S_A}, v7")
    e(f"v_add_u32 v14, 0x{GB:x}, v7")
    e(f"v_add_u32 v7, 0x{GA:x}, v7")
    e(f"s_add_u32 s{S_A}, s{S_A}, 0x{H5:x}")
    e(f"v_mov_b32 v{T+6}, 0")
    e(f"v_mov_b32 v{T+7}, v{V_TAG}")
    g.poll([(P + 16, 4, 7, 0), (P + 20, 4, 14, 0)], [P + 19, P + 23], V_TAG)
    e(f"v_cmp_eq_u32 vcc, 0, v9") if False else None
    e(f"v_and_b32 v9, 4, v0")
    e(f"v_cmp_eq_u32 vcc, 0, v9")
    e("s_nop 1")
    e(f"v_cndmask_b32 v{P+16}, v{P+17}, v{P+16}, vcc")
    e(f"v_cndmask_b32 v{P+20}, v{P+21}, v{P+20}, vcc")
    g.unpack(P + 16, V_GA, V_GA + 1)
    g.unpack(P + 20, V_GB, V_GB + 1)
    e(f"v_and_b32 v{V_XR+1}, 0xffff0000, v{V_XR}")
    e(f"v_lshlrev_b32 v{V_XR}, 16, v{V_XR}")
    if opt.gate:
        g.prepoll((P, 4, 4, 0), P + 1, V_TAG, 0xFF)
    g.poll([(P + 4 * k, 4, 4, 1024 * k) for k in range(4)], [P + 4 * k + o for k in range(4) for o in (1, 3)], V_TAG)
    g.stamp(10)
    e(f"v_add_f32 v{T}, v{P}, v{P+4}")
    e(f"v_add_f32 v{T+1}, v{P+2}, v{P+6}")
    e(f"v_add_f32 v{T+2}, v{P+8}, v{P+12}")
    e(f"v_add_f32 v{T+3}, v{P+10}, v{P+14}")
    e(f"v_add_f32 v{T}, v{T}, v{T+2}")
    e(f"v_add_f32 v{T+1}, v{T+1}, v{T+3}")
    final_reduce()
    resid(V_GA, V_XR)
    e("s_nop 1")
    e(f"v_mov_b32_dpp v{T+5}, v{T+4} row_shl:4 {FULL}")
    g.exec_mask(0x0F0F0F0F)
    e(f"buffer_store_dwordx4 {vr(T+4, 4)}, v5, {srd(R_WS)}, s{S_A} offen sc1")
    g.exec_mask(-1)
    g.unpack(T + 4, V_X1, V_X1 + 1)
    g.stamp(11)
    if opt.gate:
        g.prepoll((P, 4, 3, 0), P + 1, V_TAG, 0xFF)
    lab(l7)
    if opt.gate:
        e("s_barrier")
    c("R6: waves 0..6 gather 16 lines each")
    l8 = g.new("nor6")
    e(f"s_cmp_eq_u32 s{S_WAVE}, 7")
    e(f"s_cbranch_scc1 {l8}")
    g.poll([(P, 4, 3, 0), (P + 4, 4, 3, 1024)], [P + 1, P + 3, P + 5, P + 7], V_TAG)
    e(f"v_add_f32 v{T}, v{P}, v{P+4}")
    e(f"v_add_f32 v{T+1}, v{P+2}, v{P+6}")
    e(f"ds_write_b64 v11, {vr(T, 2)} offset:{LR6}")
    lab(l8)
    g.barrier()
    g.stamp(12)
    g.only_wave(0, "L_end")
    for w in range(7):
        e(f"ds_read_b64 {vr(P+2*w, 2)}, v11 offset:{LR6+512*w}")
    e("s_waitcnt lgkmcnt(0)")
    e(f"v_pk_add_f32 {vr(P, 2)}, {vr(P, 2)}, {vr(P+2, 2)}")
    e(f"v_pk_add_f32 {vr(P+4, 2)}, {vr(P+4, 2)}, {vr(P+6, 2)}")
    e(f"v_pk_add_f32 {vr(P+8, 2)}, {vr(P+8, 2)}, {vr(P+10, 2)}")
    e(f"v_pk_add_f32 {vr(P, 2)}, {vr(P, 2)}, {vr(P+4, 2)}")
    e(f"v_pk_add_f32 {vr(P+8, 2)}, {vr(P+8, 2)}, {vr(P+12, 2)}")
    e(f"v_pk_add_f32 {vr(T, 2)}, {vr(P, 2)}, {vr(P+8, 2)}")
    final_reduce()
    resid(V_GB, V_X1)
    g.exec_mask(0xFF)
    e(f"buffer_store_dword v{T+4}, v10, {srd(R_OUT)}, s{S_B} offen")
    e(f"s_cmp_lg_u32 s{S_JI}, 0")
    e("s_cbranch_scc1 L_end")
    g.exec_mask(1)
    e(f"v_mov_b32 v8, 0")
    e(f"buffer_store_dword v{V_TAG}, v8, {srd(R_WS)}, 0 offen")
    e("s_branch L_end")
    return lds_end, 152


def role_a(g, opt):
    e, lab, c = g.e, g.lab, g.c
    NT = " nt" if opt.nt else ""
    lab("L_A")
    if opt.only == "W":
        e("s_waitcnt lgkmcnt(0)")
        e("s_branch L_end")
    g.vtmp = 8
    V_OK, V_OV, V_OQ, V_TAG, V_LQW, V_LQR, V_LOW = 1, 2, 3, 4, 5, 6, 7
    V_G = 12
    V_K, V_V, V_VT, V_Q, V_S, V_P = 16, 48, 80, 112, 128, 136
    V_O = V_K
    T = 140
    LQA = 0
    LS = 1152
    LA = 1408
    LN = LA + 8 * 2560
    LF = LN + 256
    LH = LF + 32 * 528
    lds_end = LH + 128
    c("b = j>>2, s = j&3 ; key base = ((b*8+hkv)*4096 + 3072 + 256*s + 32*w) * 256")
    e(f"s_lshr_b32 s{S_A}, s{S_J}, 2")
    e(f"s_lshl_b32 s{S_B}, s{S_A}, 3")
    e(f"s_add_u32 s{S_B}, s{S_B}, s{S_XCD}")
    e(f"s_lshl_b32 s{S_B}, s{S_B}, 12")
    e(f"s_and_b32 s{S_C}, s{S_J}, 3")
    e(f"s_lshl_b32 s{S_C}, s{S_C}, 8")
    e(f"s_add_u32 s{S_B}, s{S_B}, s{S_C}")
    e(f"s_lshl_b32 s{S_C}, s{S_WAVE}, 5")
    e(f"s_add_u32 s{S_B}, s{S_B}, s{S_C}")
    e(f"s_add_u32 s{S_B}, s{S_B}, 3072")
    e(f"s_lshl_b32 s{S_B}, s{S_B}, 8")
    e(f"s_add_u32 s{S_C}, s{S_B}, 4096")
    e(f"v_and_b32 v8, 15, v0")
    e(f"v_lshrrev_b32 v9, 4, v0")
    e(f"v_lshlrev_b32 v{V_OK}, 8, v8")
    e(f"v_lshl_add_u32 v{V_OK}, v9, 4, v{V_OK}")
    e(f"v_lshlrev_b32 v{V_OV}, 10, v9")
    e(f"v_lshl_add_u32 v{V_OV}, v8, 4, v{V_OV}")
    g.mk_srd(R_K, 4 * 8 * 4096 * 256)
    g.mk_srd(R_V, 4 * 8 * 4096 * 256)
    e("s_waitcnt lgkmcnt(0)")
    g.stamp(1)
    e(f"s_load_dword s{S_TAG}, s[{R_WS}:{R_WS+1}], 0")
    for t in range(2):
        for db in range(4):
            e(f"buffer_load_dwordx4 {vr(V_K+16*t+4*db, 4)}, v{V_OK}, {srd(R_K)}, s{(S_B, S_C)[t]} offen offset:{64*db}{opt.kflag}")
    for t in range(2):
        for r in range(4):
            e(f"buffer_load_dwordx4 {vr(V_V+16*t+4*r, 4)}, v{V_OV}, {srd(R_V)}, s{(S_B, S_C)[t]} offen offset:{256*r}{NT}")
    c("q granule addr = H2 + ((xcd*4+b)*128 + 16w + (l&15))*16")
    e(f"s_lshl_b32 s{S_T}, s{S_XCD}, 2")
    e(f"s_add_u32 s{S_T}, s{S_T}, s{S_A}")
    e(f"s_lshl_b32 s{S_T}, s{S_T}, 11")
    e(f"s_lshl_b32 s{S_D}, s{S_WAVE}, 8")
    e(f"s_add_u32 s{S_T}, s{S_T}, s{S_D}")
    e(f"s_add_u32 s{S_T}, s{S_T}, 0x{H2:x}")
    e(f"v_lshlrev_b32 v{V_OQ}, 4, v8")
    e(f"v_add_u32 v{V_OQ}, s{S_T}, v{V_OQ}")
    g.poll_loads([(V_G, 4, V_OQ, 0)])
    g.stamp(2)
    c("LDS q write: (w>>1)*272 + (w&1)*128 + (l&15)*8 ; read: ((l&15)>>2)*272 + (l>>4)*16")
    e(f"s_lshr_b32 s{S_T}, s{S_WAVE}, 1")
    e(f"s_mul_i32 s{S_T}, s{S_T}, 272")
    e(f"s_and_b32 s{S_D}, s{S_WAVE}, 1")
    e(f"s_lshl_b32 s{S_D}, s{S_D}, 7")
    e(f"s_add_u32 s{S_T}, s{S_T}, s{S_D}")
    e(f"v_lshlrev_b32 v{V_LQW}, 3, v8")
    e(f"v_add_u32 v{V_LQW}, s{S_T}, v{V_LQW}")
    e(f"v_lshrrev_b32 v10, 2, v8")
    e(f"v_mul_u32_u24 v{V_LQR}, 272, v10")
    e(f"v_lshl_add_u32 v{V_LQR}, v9, 4, v{V_LQR}")
    c("o partial write: LA + w*2560 + head(l>>4)*640 + piece*40 ; stats write: LS + (head*8+w)*8")
    e(f"v_mul_u32_u24 v{V_LOW}, 640, v9")
    e(f"v_mad_u32_u24 v{V_LOW}, v8, 40, v{V_LOW}")
    e(f"s_mul_i32 s{S_T}, s{S_WAVE}, 2560")
    e(f"s_add_u32 s{S_T}, s{S_T}, {LA}")
    e(f"v_add_u32 v{V_LOW}, s{S_T}, v{V_LOW}")
    V_LSW = 11
    e(f"v_lshlrev_b32 v{V_LSW}, 6, v10")
    e(f"s_lshl_b32 s{S_T}, s{S_WAVE}, 3")
    e(f"v_add_u32 v{V_LSW}, s{S_T}, v{V_LSW}")
    g.mk_srd(R_W1, 512 * 3584)
    g.mk_srd(R_W3, 512 * 3584)
    g.mk_srd(R_W2, 1792 * 1024)
    e("s_waitcnt lgkmcnt(0)")
    g.make_tag(V_TAG)
    for q in range(4):
        e(f"s_waitcnt vmcnt({7-2*q})")
        g.transpose_pair(V_V, q, 8, 4, V_VT)
    g.stamp(3)
    if opt.only == "A":
        e("s_branch L_end")
    g.poll([(V_G, 4, V_OQ, 0)], [V_G + 3], V_TAG, first_issued=True)
    g.stamp(4)
    e(f"ds_write_b64 v{V_LQW}, {vr(V_G, 2)} offset:{LQA}")
    g.barrier()
    for db in range(4):
        e(f"ds_read_b128 {vr(V_Q+4*db, 4)}, v{V_LQR} offset:{LQA+64*db}")
    for db in range(4):
        e(f"s_waitcnt lgkmcnt({3-db})" if not opt.stamps else "s_waitcnt lgkmcnt(0)")
        for t in range(2):
            cin = "0" if db == 0 else vr(V_S + 4 * t, 4)
            e(f"v_mfma_f32_16x16x32_bf16 {vr(V_S+4*t, 4)}, {vr(V_K+16*t+4*db, 4)}, {vr(V_Q+4*db, 4)}, {cin}")
    e("s_nop 6")
    for k in range(0, 8, 2):
        g.round2(V_S + k, V_S + k + 1, T)
    for k in range(8):
        e(f"v_mul_f32 v{V_S+k}, 0x{SCALE:x}, v{V_S+k}")
    for k in range(0, 8, 2):
        g.round2(V_S + k, V_S + k + 1, T)
    e(f"v_max3_f32 v{T}, v{V_S}, v{V_S+1}, v{V_S+2}")
    e(f"v_max3_f32 v{T+1}, v{V_S+3}, v{V_S+4}, v{V_S+5}")
    e(f"v_max3_f32 v{T}, v{T}, v{V_S+6}, v{V_S+7}")
    e(f"v_max_f32 v{T}, v{T}, v{T+1}")
    g.swap_reduce("v_max_f32", [T], [T + 1], 16)
    g.swap_reduce("v_max_f32", [T], [T + 1], 32)
    for k in range(8):
        e(f"v_sub_f32 v{V_S+k}, v{V_S+k}, v{T}")
    for k in range(8):
        e(f"v_mul_f32 v{V_S+k}, 0x{LOG2E:x}, v{V_S+k}")
    for k in range(8):
        e(f"v_exp_f32 v{V_S+k}, v{V_S+k}")
    for k in range(4):
        e(f"v_cvt_pk_bf16_f32 v{V_P+k}, v{V_S+2*k}, v{V_S+2*k+1}")
    e(f"v_pk_add_f32 {vr(T+2, 2)}, {vr(V_S, 2)}, {vr(V_S+2, 2)}")
    e(f"v_pk_add_f32 {vr(T+4, 2)}, {vr(V_S+4, 2)}, {vr(V_S+6, 2)}")
    for c8 in range(8):
        e(f"v_mfma_f32_16x16x32_bf16 {vr(V_O+4*c8, 4)}, {vr(V_P, 4)}, {vr(V_VT+4*c8, 4)}, 0")
    e(f"v_pk_add_f32 {vr(T+2, 2)}, {vr(T+2, 2)}, {vr(T+4, 2)}")
    e(f"v_add_f32 v{T+1}, v{T+2}, v{T+3}")
    g.swap_reduce("v_add_f32", [T + 1], [T + 2], 16)
    g.swap_reduce("v_add_f32", [T + 1], [T + 2], 32)
    e(f"ds_write_b64 v{V_LSW}, {vr(T, 2)} offset:{LS}")
    for c8 in range(0, 8, 2):
        e(f"ds_write2_b32 v{V_LOW}, v{V_O+4*c8}, v{V_O+4*(c8+1)} offset0:{c8} offset1:{c8+1}")
    c("combine addresses (waves 0..3 = head): stats LS + head*64 + (l&7)*8 ; o: LA + head*640 + (l>>2)*40 + (l&3)*8")
    e(f"v_and_b32 v8, 7, v0")
    e(f"v_lshlrev_b32 v8, 3, v8")
    e(f"s_lshl_b32 s{S_T}, s{S_WAVE}, 6")
    e(f"v_add_u32 v8, s{S_T}, v8")
    e(f"v_lshrrev_b32 v9, 2, v0")
    e(f"v_mul_u32_u24 v9, 40, v9")
    e(f"v_and_b32 v10, 3, v0")
    e(f"v_lshl_add_u32 v9, v10, 3, v9")
    e(f"s_mul_i32 s{S_T}, s{S_WAVE}, 640")
    e(f"v_add_u32 v9, s{S_T}, v9")
    c("H3 addr = H3 + ((xcd*4+head)*16 + j)*1024 + l*16")
    e(f"s_lshl_b32 s{S_T}, s{S_XCD}, 2")
    e(f"s_add_u32 s{S_T}, s{S_T}, s{S_WAVE}")
    e(f"s_lshl_b32 s{S_T}, s{S_T}, 4")
    e(f"s_add_u32 s{S_T}, s{S_T}, s{S_J}")
    e(f"s_lshl_b32 s{S_T}, s{S_T}, 10")
    e(f"s_add_u32 s{S_D}, s{S_T}, 0x{H3:x}")
    e(f"v_lshlrev_b32 v10, 4, v0")
    g.barrier()
    g.stamp(5)
    l1 = g.new("nocomb")
    e(f"s_cmp_ge_u32 s{S_WAVE}, 4")
    e(f"s_cbranch_scc1 {l1}")
    e(f"ds_read_b64 {vr(T, 2)}, v8 offset:{LS}")
    for w in range(8):
        e(f"ds_read_b64 {vr(T+8+2*w, 2)}, v9 offset:{LA+2560*w}")
    e("s_waitcnt lgkmcnt(8)" if not opt.stamps else "s_waitcnt lgkmcnt(0)")
    e(f"v_max_f32_dpp v{T+2}, v{T}, v{T} quad_perm:[1,0,3,2] {FULL}")
    e("s_nop 1")
    e(f"v_max_f32_dpp v{T+2}, v{T+2}, v{T+2} quad_perm:[2,3,0,1] {FULL}")
    e("s_nop 1")
    e(f"v_max_f32_dpp v{T+2}, v{T+2}, v{T+2} row_half_mirror {FULL}")
    e(f"v_sub_f32 v{T}, v{T}, v{T+2}")
    e(f"v_mul_f32 v{T}, 0x{LOG2E:x}, v{T}")
    e(f"v_exp_f32 v{T}, v{T}")
    e("s_nop 0")
    e(f"v_mul_f32 v{T+1}, v{T}, v{T+1}")
    e("s_nop 1")
    g.dpp("v_add_f32", [T + 1], "quad_perm:[1,0,3,2]")
    g.dpp("v_add_f32", [T + 1], "quad_perm:[2,3,0,1]")
    g.dpp("v_add_f32", [T + 1], "row_half_mirror", tail=False)
    e(f"v_rcp_f32 v{T+3}, v{T+1}")
    e(f"v_log_f32 v{T+1}, v{T+1}")
    e(f"v_mul_f32 v{T}, v{T}, v{T+3}")
    e(f"v_mov_b32 v{T+7}, v{V_TAG}")
    for w in range(8):
        e(f"v_readlane_b32 s{S_G+w}, v{T}, {w}")
    e(f"v_mov_b32 v{T+6}, 0x{LOG2E:x}")
    e(f"v_fma_f32 v{T+6}, v{T+2}, v{T+6}, v{T+1}")
    e("s_waitcnt lgkmcnt(0)")
    e(f"v_mul_f32 v{T+4}, s{S_G}, v{T+8}")
    e(f"v_mul_f32 v{T+5}, s{S_G}, v{T+9}")
    for w in range(1, 8):
        e(f"v_fmac_f32 v{T+4}, s{S_G+w}, v{T+8+2*w}")
        e(f"v_fmac_f32 v{T+5}, s{S_G+w}, v{T+9+2*w}")
    e(f"buffer_store_dwordx4 {vr(T+4, 4)}, v10, {srd(R_WS)}, s{S_D} offen sc1")
    lab(l1)
    g.stamp(6)
    e(f"s_cmp_ge_u32 s{S_J}, 14")
    e("s_cbranch_scc1 L_end")
    V_ROW, V_CG, V_O1, V_GO = 1, 2, 3, 5
    V_W1, V_W3, V_W2 = 16, 24, 32
    V_W1T, V_W3T, V_W2T = 40, 48, 56
    V_CBG, V_SBG, V_XG = 64, 68, 72
    V_CBF, V_SBF, V_XF = 76, 80, 84
    V_ACC = 96
    V_LFW, V_LFR, V_LNW, V_LNR, V_LHW, V_LHR, V_O6 = 6, 7, 10, 11, 12, 13, 14
    e(f"s_mul_i32 s{S_JI}, s{S_XCD}, 14")
    e(f"s_add_u32 s{S_JI}, s{S_JI}, s{S_J}")
    g.rowb(V_ROW, V_CG, 8)
    e(f"v_mul_u32_u24 v{V_O1}, 3584, v{V_ROW}")
    e(f"v_lshl_add_u32 v{V_O1}, v{V_CG}, 3, v{V_O1}")
    e(f"s_lshl_b32 s{S_A}, s{S_JI}, 5")
    e(f"s_add_u32 s{S_B}, s{S_A}, 7168")
    for R, V in ((R_W1, V_W1), (R_W3, V_W3)):
        for j in range(4):
            e(f"buffer_load_dwordx2 {vr(V+2*j, 2)}, v{V_O1}, {srd(R)}, s{(S_A, S_B)[j>>1]} offen offset:{3584*(j&1)}")
    e(f"v_lshrrev_b32 v9, 4, v0")
    e(f"v_and_b32 v8, 15, v0")
    e(f"v_lshlrev_b32 v15, 12, v9")
    e(f"v_lshl_add_u32 v15, v8, 3, v15")
    e(f"s_lshl_b32 s{S_A}, s{S_JI}, 14")
    e(f"s_lshl_b32 s{S_B}, s{S_WAVE}, 7")
    e(f"s_add_u32 s{S_A}, s{S_A}, s{S_B}")
    for j in range(4):
        e(f"buffer_load_dwordx2 {vr(V_W2+2*j, 2)}, v15, {srd(R_W2)}, s{S_A} offen offset:{1024*j}{NT}")
    e(f"v_add_lshl_u32 v{V_GO}, v{V_ROW}, v{V_CG}, 4")
    e(f"s_and_b32 s{S_T}, s{S_XCD}, 3")
    e(f"s_mul_i32 s{S_T}, s{S_T}, 0x{REP:x}")
    e(f"v_add_u32 v{V_GO}, s{S_T}, v{V_GO}")
    e(f"v_add_u32 v{V_O1}, 0x{CB:x}, v{V_GO}")
    e(f"v_add_u32 v15, 0x{SB:x}, v{V_GO}")
    e(f"v_add_u32 v{V_GO}, 0x{H5:x}, v{V_GO}")
    c("LDS: partial write LF + p*528 + b*128 ; read pp*528 + Q*16 ; LN write (b*8+w)*8, read b*64")
    e(f"s_lshl_b32 s{S_T}, s{S_WAVE}, 2")
    e(f"v_add_u32 v{V_LFR}, s{S_T}, v9")
    e(f"v_mul_u32_u24 v{V_LFW}, 528, v{V_LFR}")
    e(f"v_lshl_add_u32 v{V_LFW}, v{V_CG}, 7, v{V_LFW}")
    e(f"v_add_u32 v{V_LFW}, {LF}, v{V_LFW}")
    e(f"v_lshlrev_b32 v{V_LFR}, 4, v{V_LFR}")
    e(f"s_movk_i32 s{S_T}, 528")
    e(f"v_mad_u32_u24 v{V_LFR}, v8, s{S_T}, v{V_LFR}")
    e(f"v_lshlrev_b32 v{V_LNR}, 6, v{V_CG}")
    e(f"s_lshl_b32 s{S_T}, s{S_WAVE}, 3")
    e(f"v_add_u32 v{V_LNW}, s{S_T}, v{V_LNR}")
    c("hh write: (w>>1)*32 + (2*(w&1) + (l>>5))*8 + ((l>>2)&3)*2 = w*16 + (l>>5)*8 + bank*2 ; read: ((l&15)>>2)*32 + (l>>4)*8")
    e(f"v_lshrrev_b32 v{V_LHW}, 5, v0")
    e(f"v_lshlrev_b32 v{V_LHW}, 3, v{V_LHW}")
    e(f"v_bfe_u32 v{V_LHR}, v0, 2, 2")
    e(f"v_lshl_add_u32 v{V_LHW}, v{V_LHR}, 1, v{V_LHW}")
    e(f"s_lshl_b32 s{S_T}, s{S_WAVE}, 4")
    e(f"v_add_u32 v{V_LHW}, s{S_T}, v{V_LHW}")
    e(f"v_lshlrev_b32 v{V_LHR}, 5, v{V_LHR}")
    e(f"v_lshl_add_u32 v{V_LHR}, v9, 3, v{V_LHR}")
    c("H6 addr = H6 + ((16w + n)*112 + fb)*128 + mg*16")
    e(f"s_lshl_b32 s{S_T}, s{S_WAVE}, 4")
    e(f"v_add_u32 v{V_O6}, s{S_T}, v8")
    e(f"v_mul_u32_u24 v{V_O6}, 14336, v{V_O6}")
    e(f"v_lshl_add_u32 v{V_O6}, v9, 4, v{V_O6}")
    e(f"s_lshl_b32 s{S_D}, s{S_JI}, 7")
    e(f"s_add_u32 s{S_D}, s{S_D}, 0x{H6:x}")
    g.poll([(V_CBG, 4, V_O1, 0), (V_SBG, 4, 15, 0)], [V_CBG + 3, V_SBG + 3], V_TAG)
    g.stamp(7)
    g.transpose(V_W1, 4, 2, V_W1T)
    g.transpose(V_W3, 4, 2, V_W3T)
    g.transpose(V_W2, 4, 2, V_W2T)
    g.unpack(V_CBG, V_CBF, V_CBF + 1)
    g.unpack(V_CBG + 1, V_CBF + 2, V_CBF + 3)
    g.unpack(V_SBG, V_SBF, V_SBF + 1)
    g.unpack(V_SBG + 1, V_SBF + 2, V_SBF + 3)
    g.gate((V_XG, 4, V_GO, 0), V_XG + 3, V_TAG, 0xF)
    g.poll([(V_XG, 4, V_GO, 0)], [V_XG + 3], V_TAG)
    g.stamp(8)
    g.unpack(V_XG, V_XF, V_XF + 1)
    g.unpack(V_XG + 1, V_XF + 2, V_XF + 3)
    e(f"v_pk_add_f32 {vr(T+2, 2)}, {vr(V_XF, 2)}, {vr(V_XF+2, 2)}")
    e(f"v_pk_mul_f32 {vr(T+4, 2)}, {vr(V_XF, 2)}, {vr(V_XF, 2)}")
    e(f"v_pk_fma_f32 {vr(T+4, 2)}, {vr(V_XF+2, 2)}, {vr(V_XF+2, 2)}, {vr(T+4, 2)}")
    e(f"v_add_f32 v{T}, v{T+2}, v{T+3}")
    e(f"v_add_f32 v{T+1}, v{T+4}, v{T+5}")
    e("s_nop 1")
    g.dpp("v_add_f32", [T, T + 1], "row_ror:4")
    g.dpp("v_add_f32", [T, T + 1], "row_ror:8", tail=False)
    g.swap_reduce("v_add_f32", [T, T + 1], [T + 2, T + 3], 16)
    g.swap_reduce("v_add_f32", [T, T + 1], [T + 2, T + 3], 32)
    e(f"ds_write_b64 v{V_LNW}, {vr(T, 2)} offset:{LN}")
    g.barrier()
    for k in range(4):
        e(f"ds_read_b128 {vr(T+4*k, 4)}, v{V_LNR} offset:{LN+16*k}")
    e("s_waitcnt lgkmcnt(0)")
    e(f"v_pk_add_f32 {vr(T, 2)}, {vr(T, 2)}, {vr(T+2, 2)}")
    e(f"v_pk_add_f32 {vr(T+4, 2)}, {vr(T+4, 2)}, {vr(T+6, 2)}")
    e(f"v_pk_add_f32 {vr(T+8, 2)}, {vr(T+8, 2)}, {vr(T+10, 2)}")
    e(f"v_pk_add_f32 {vr(T+12, 2)}, {vr(T+12, 2)}, {vr(T+14, 2)}")
    e(f"v_pk_add_f32 {vr(T, 2)}, {vr(T, 2)}, {vr(T+4, 2)}")
    e(f"v_pk_add_f32 {vr(T+8, 2)}, {vr(T+8, 2)}, {vr(T+12, 2)}")
    e(f"v_pk_add_f32 {vr(T, 2)}, {vr(T, 2)}, {vr(T+8, 2)}")
    e(f"v_mul_f32 v{T}, 0x{INV512:x}, v{T}")
    e(f"v_mul_f32 v{T+1}, 0x{INV512:x}, v{T+1}")
    e(f"v_fma_f32 v{T+1}, -v{T}, v{T}, v{T+1}")
    e(f"v_max_f32 v{T+1}, 0, v{T+1}")
    g.ln_finish(T, T + 1, T + 2)
    for k in range(4):
        e(f"v_sub_f32 v{V_XF+k}, v{V_XF+k}, v{T}")
    g.round2(V_XF, V_XF + 1, T + 2)
    g.round2(V_XF + 2, V_XF + 3, T + 3)
    for k in range(4):
        e(f"v_mul_f32 v{V_XF+k}, v{V_XF+k}, v{T+1}")
    g.round2(V_XF, V_XF + 1, T + 2)
    g.round2(V_XF + 2, V_XF + 3, T + 3)
    for k in range(4):
        e(f"v_mul_f32 v{V_XF+k}, v{V_XF+k}, v{V_CBF+k}")
    g.round2(V_XF, V_XF + 1, T + 2)
    g.round2(V_XF + 2, V_XF + 3, T + 3)
    for k in range(4):
        e(f"v_add_f32 v{V_XF+k}, v{V_XF+k}, v{V_SBF+k}")
    e(f"v_cvt_pk_bf16_f32 v{T+2}, v{V_XF}, v{V_XF+1}")
    e(f"v_cvt_pk_bf16_f32 v{T+3}, v{V_XF+2}, v{V_XF+3}")
    e("s_nop 1")
    for mat, WT in enumerate((V_W1T, V_W3T)):
        for el in range(4):
            e(f"v_mfma_f32_16x16x16_bf16 {vr(V_ACC+16*mat+4*el, 4)}, {vr(WT+2*el, 2)}, {vr(T+2, 2)}, 0")
    g.exec_mask(USEFUL)
    c("LDS layout [p][b][fq=cg][mat][e]")
    for mat in range(2):
        for el in (0, 2):
            if mat == 1 and el == 2:
                e("s_nop 0")
            for cg in range(4):
                a = V_ACC + 16 * mat + 4 * el + cg
                e(f"ds_write2_b32 v{V_LFW}, v{a}, v{a+4} offset0:{8*cg+4*mat+el} offset1:{8*cg+4*mat+el+1}")
    g.exec_mask(-1)
    g.barrier()
    g.stamp(9)
    e(f"ds_read_b128 {vr(T+2, 4)}, v{V_LFR} offset:{LF}")
    e(f"ds_read_b128 {vr(T+6, 4)}, v{V_LFR} offset:{LF+16*528}")
    e("s_waitcnt lgkmcnt(0)")
    e(f"v_pk_add_f32 {vr(T+2, 2)}, {vr(T+2, 2)}, {vr(T+6, 2)}")
    e(f"v_pk_add_f32 {vr(T+4, 2)}, {vr(T+4, 2)}, {vr(T+8, 2)}")
    g.scatter4([[T + 2, T + 3, T + 4, T + 5]], [T + 6, T + 7], [T])
    g.round1(T)
    e(f"v_mov_b32 v{T+1}, v{T}")
    e("s_nop 1")
    e(f"v_permlane16_swap_b32 v{T}, v{T+1}")
    e(f"v_mul_f32 v{T+2}, 0x{LOG2E:x}, v{T}")
    e(f"v_exp_f32 v{T+2}, -v{T+2}")
    e("s_nop 0")
    e(f"v_add_f32 v{T+2}, 1.0, v{T+2}")
    e(f"v_rcp_f32 v{T+2}, v{T+2}")
    e("s_nop 0")
    e(f"v_mul_f32 v{T}, v{T}, v{T+2}")
    g.round1(T)
    e(f"v_mul_f32 v{T}, v{T}, v{T+1}")
    e(f"v_cvt_pk_bf16_f32 v{T}, v{T}, v{T}")
    e(f"ds_write_b16 v{V_LHW}, v{T} offset:{LH}")
    g.barrier()
    e(f"ds_read_b64 {vr(T, 2)}, v{V_LHR} offset:{LH}")
    e("s_waitcnt lgkmcnt(0)")
    for el in range(4):
        e(f"v_mfma_f32_16x16x16_bf16 {vr(V_ACC+4*el, 4)}, {vr(T, 2)}, {vr(V_W2T+2*el, 2)}, 0")
    e("s_nop 5")
    for h in range(2):
        a = V_ACC + 8 * h
        e(f"v_mov_b32 v{a+1}, v{V_TAG}")
        e(f"v_mov_b32 v{a+3}, v{V_TAG}")
        e(f"v_mov_b32 v{a+2}, v{a+4}")
        e(f"buffer_store_dwordx4 {vr(a, 4)}, v{V_O6}, {srd(R_WS)}, s{S_D} offen offset:{64*h} sc1")
    g.stamp(10)
    e("s_branch L_end")
    return lds_end, 164


def build(opt):
    g = Gen(opt)
    e, lab = g.e, g.lab
    if opt.stamps:
        for i in range(1, NSTAMP):
            e(f"s_mov_b64 s[{S_ST+2*i}:{S_ST+2*i+1}], 0")
    g.stamp(0)
    if opt.stamps:
        e("s_memrealtime s[98:99]")
    e("s_cmp_ge_u32 s2, 256")
    e("s_cbranch_scc1 L_exit")
    for r, slot in ((R_WS, 13), (R_C, 9), (R_WM, 10), (R_K, 1), (R_V, 2), (R_WQ, 3), (R_X, 0), (R_WO, 4),
                    (R_W1, 6), (R_W3, 7), (R_W2, 8), (R_OUT, 11)):
        e(f"s_load_dwordx2 s[{r}:{r+1}], s[0:1], {slot*8}")
    e("v_lshrrev_b32 v1, 6, v0")
    e("v_and_b32 v0, 63, v0")
    e(f"s_and_b32 s{S_XCD}, s2, 7")
    e(f"v_readfirstlane_b32 s{S_WAVE}, v1")
    e(f"s_bfe_u32 s{S_J}, s2, 0x40003")
    e(f"s_mov_b32 s{S_PLO}, 0x05040100")
    e(f"s_mov_b32 s{S_PHI}, 0x07060302")
    e(f"s_mov_b32 s{S_BUDGET}, 0x4000")
    g.mk_srd(R_WS, WS_SIZE)
    g.L.append("@WARM@")
    lab("L_warm_done")
    e("s_mov_b64 exec, -1")
    e("s_cmp_lt_u32 s2, 128")
    e("s_cbranch_scc1 " + ("L_W" if opt.wfirst else "L_A"))
    e("s_branch " + ("L_A" if opt.wfirst else "L_W"))
    g.L.append("@ROLE W@")
    ldsw, vw = role_w(g, opt)
    g.L.append("@ROLE A@")
    ldsa, va = role_a(g, opt)
    g.L.append("@ROLE E@")
    lab("L_end")
    if opt.stamps:
        e("s_memtime s[70:71]")
        e("s_memrealtime s[100:101]")
        e("s_waitcnt lgkmcnt(0)")
        g.exec_mask(-1)
        e(f"s_lshl_b32 s{S_T}, s2, 3")
        e(f"s_add_u32 s{S_T}, s{S_T}, s{S_WAVE}")
        e(f"s_lshl_b32 s{S_T}, s{S_T}, 7")
        e(f"s_add_u32 s{S_T}, s{S_T}, 0x{STAMP:x}")
        e(f"v_mov_b32 v1, s{S_T}")
        for i in range(NSTAMP):
            e(f"v_mov_b32 v2, s{S_ST+2*i}")
            e(f"buffer_store_dword v2, v1, {srd(R_WS)}, 0 offen offset:{4*i}")
        for k, r in enumerate((70, 98, 100, S_BUDGET)):
            e(f"v_mov_b32 v2, s{r}")
            e(f"buffer_store_dword v2, v1, {srd(R_WS)}, 0 offen offset:{4*NSTAMP+4*k}")
    lab("L_exit")
    e("s_endpgm")
    return g.L, max(ldsw, ldsa), max(vw, va)


HEADER = open(os.path.join(os.path.dirname(os.path.abspath(__file__)), "header.txt")).read()


def render(lines, lds, nv, warm):
    nva = (nv + 7) // 8 * 8
    out = [HEADER.rstrip("\n"), f"; @launch grid=(256,1,1) block=(512,1,1) lds={lds}",
           '.amdgcn_target "amdgcn-amd-amdhsa--gfx950"', ".text", f".globl {KN}", ".p2align 12",
           f".type {KN},@function", f"{KN}:"]
    for ln in lines:
        if ln == "@WARM@":
            out += warm
        elif ln.startswith("@ROLE"):
            out.append("; " + ln)
        else:
            out.append(ln)
    out += ['.section .rodata,"a"', ".p2align 6", f".amdhsa_kernel {KN}",
            f"  .amdhsa_next_free_vgpr {nva}", "  .amdhsa_next_free_sgpr 102", f"  .amdhsa_accum_offset {nva}",
            "  .amdhsa_group_segment_fixed_size 0", "  .amdhsa_kernarg_size 112", "  .amdhsa_user_sgpr_count 2",
            "  .amdhsa_user_sgpr_kernarg_segment_ptr 1", "  .amdhsa_system_sgpr_workgroup_id_x 1",
            ".end_amdhsa_kernel", ""]
    return "\n".join(out)


def offsets(text):
    open("_g.s", "w").write(text)
    r = subprocess.run(["clang", "-x", "assembler", "-target", "amdgcn-amd-amdhsa", "-mcpu=gfx950",
                        "-c", "_g.s", "-o", "_g.o"], capture_output=True, text=True)
    if r.returncode:
        sys.stderr.write(r.stderr)
        sys.exit(1)
    d = subprocess.run(["llvm-objdump", "-d", "--mcpu=gfx950", "_g.o"], capture_output=True, text=True).stdout
    return [int(m.group(1), 16) for m in re.finditer(r"// ([0-9A-F]{12}):", d)]


def is_instr(ln):
    s = ln.strip()
    return ln.startswith("    ") and not s.startswith(";")


def add_pads(lines, lds, nv, opt):
    if not opt.warm:
        return lines, []
    NW = 8
    def warm_code(padsW, padsA):
        w = ["    s_mov_b64 exec, 0", "    s_cmp_lt_u32 s2, 128",
             "    s_cbranch_scc1 " + ("L_warmW" if opt.wfirst else "L_warmA"),
             ("L_warmA:" if opt.wfirst else "L_warmW:")]
        first, second = (padsA, padsW) if opt.wfirst else (padsW, padsA)
        for k in range(opt.maxpads):
            w += [f"    s_cmp_eq_u32 s{S_WAVE}, {k}", f"    s_cbranch_scc1 {first[k] if k < len(first) else 'L_warm_done'}"]
        w += ["    s_branch L_warm_done", ("L_warmW:" if opt.wfirst else "L_warmA:")]
        for k in range(opt.maxpads):
            w += [f"    s_cmp_eq_u32 s{S_WAVE}, {k}", f"    s_cbranch_scc1 {second[k] if k < len(second) else 'L_warm_done'}"]
        return w
    lines = list(lines)
    npad = 0
    targets = [p * 4096 + o for p in range(8) for o in (0, 1088, 2176, 3264)][1:]
    pads = {"W": [], "A": [], "E": []}
    for tgt in targets:
        offs = offsets(render(lines, lds, nv, warm_code([], [])))
        if tgt >= offs[-1]:
            break
        k = 0
        role = None
        pos = None
        for li, ln in enumerate(lines):
            if ln == "@WARM@":
                k += sum(1 for x in warm_code([], []) if is_instr(x))
                continue
            if ln.startswith("@ROLE"):
                role = ln[6]
                continue
            if is_instr(ln):
                if offs[k] >= tgt:
                    pos = li
                    break
                k += 1
        assert offs[k] < tgt + 60, "no instruction boundary in window line"
        assert role is not None, "prologue longer than first window"
        name = f"L_pad_{npad}"
        npad += 1
        lines[pos:pos] = [name + ":", "    s_cbranch_execz L_warm_done"]
        pads[role].append(name)
    pw = pads["W"]
    pa = ([pads["W"][-1]] if pads["W"] else []) + pads["A"]
    assert len(pw) <= opt.maxpads and len(pa) <= opt.maxpads, (len(pw), len(pa))
    return lines, warm_code(pw, pa)


def main():
    ap = argparse.ArgumentParser()
    ap.add_argument("-o", default="adaLN_cond__sliding_block_cached__glu_gated_swiglu__decode.s")
    ap.add_argument("--stamps", action="store_true")
    ap.add_argument("--nt", type=int, default=1)
    ap.add_argument("--wqflag", default="")
    ap.add_argument("--kflag", default=" nt")
    ap.add_argument("--wfirst", type=int, default=1)
    ap.add_argument("--warm", type=int, default=1)
    ap.add_argument("--maxpads", type=int, default=6)
    ap.add_argument("--gate", type=int, default=1)
    ap.add_argument("--only", default="")
    opt = ap.parse_args()
    opt.wqflag = (" " + opt.wqflag.strip()) if opt.wqflag.strip() else ""
    opt.kflag = (" " + opt.kflag.strip()) if opt.kflag.strip() else ""
    lines, lds, nv = build(opt)
    lines, warm = add_pads(lines, lds, nv, opt)
    text = render(lines, lds, nv, warm)
    offs = offsets(text)
    open(opt.o, "w").write(text)
    sys.stderr.write(f"code bytes {offs[-1]+4}, lds {lds}, vgpr {nv}\n")


main()
```
